```python
import torch

def _softmax(x, axis=-1):
    return torch.softmax(x, dim=axis)
def _gelu(x):
    return torch.nn.functional.gelu(x, approximate="tanh")
def _silu(x):
    return torch.nn.functional.silu(x)
def _sigmoid(x):
    return torch.sigmoid(x)
def _layernorm(x, axis=-1, eps=1e-5):
    m = x.mean(dim=axis, keepdim=True)
    v = x.var(dim=axis, keepdim=True, unbiased=False)
    return (x - m) / torch.sqrt(v + eps)
def _scatter_add(tgt, idx, src, axis=0):
    return tgt.clone().index_add_(axis, idx, src)
def _segment_sum(src, seg, n):
    out = torch.zeros((n,) + src.shape[1:], dtype=src.dtype)
    return out.index_add_(0, seg, src)
def _pad(x, pw):
    flat = tuple(v for pair in reversed(pw) for v in pair)
    return torch.nn.functional.pad(x, flat)

kernel_name = 'recurrent_scan__sliding_block_cached__glu_gated_swiglu__decode'

def setup_inputs():

    _w = (lambda a: (lambda t: t.to(torch.bfloat16) if t.is_floating_point() else t)(torch.as_tensor(a)))
    def _A_setup():
        B, Sq, D = 4, 1, 512
        Hq, Hkv, Sk, Dh = 32, 8, 4096, 128
        assert Hq % Hkv == 0, (Hq, Hkv)
        return {
            "x": _w((lambda *s: torch.randn(*s, dtype=torch.bfloat16) * 0.05)(B, Sq, D)),
            "k_cache": _w((lambda *s: torch.randn(*s, dtype=torch.bfloat16) * 1.6)(B, Hkv, Sk, Dh)),
            "v_cache": _w((lambda *s: torch.randn(*s, dtype=torch.bfloat16) * 1.6)(B, Hkv, Sk, Dh)),
            "wq": _w((lambda *s: torch.randn(*s, dtype=torch.bfloat16) * 1.6)(D, Hq * Dh) * (D ** -0.5)),
            "wo": _w((lambda *s: torch.randn(*s, dtype=torch.bfloat16) * 1.6)(Hq * Dh, D) * ((Hq * Dh) ** -0.5)),
        }
    _A_in = _A_setup()

    def _B_setup():
        B, S, D, F = 4, 1, 512, 1792
        return {
            "x": _w((lambda *s: torch.randn(*s, dtype=torch.bfloat16) * 0.05)(B, S, D)),
            "w1": _w((lambda *s: torch.randn(*s, dtype=torch.bfloat16) * 0.2)(D, F) * (2.0 / D) ** 0.5),
            "w3": _w((lambda *s: torch.randn(*s, dtype=torch.bfloat16) * 0.2)(D, F) * (2.0 / D) ** 0.5),
            "w2": _w((lambda *s: torch.randn(*s, dtype=torch.bfloat16) * 0.2)(F, D) * (2.0 / F) ** 0.5),
        }
    _B_in = _B_setup()

    return {
        "A_x": _A_in["x"],
        "A_k_cache": _A_in["k_cache"],
        "A_v_cache": _A_in["v_cache"],
        "A_wq": _A_in["wq"],
        "A_wo": _A_in["wo"],
        "B_x": _B_in["x"],
        "B_w1": _B_in["w1"],
        "B_w3": _B_in["w3"],
        "B_w2": _B_in["w2"],
    }

def reference(A_x, A_k_cache, A_v_cache, A_wq, A_wo, B_x, B_w1, B_w3, B_w2):
    def _A_ref(x, k_cache, v_cache, wq, wo):
        B, Sq, D = x.shape
        Hq, Dh = 32, 128
        Hkv, Sk = k_cache.shape[1], k_cache.shape[2]
        W = min(4096, max(256, Sk // 4))
        rep = Hq // Hkv
        q = (lambda x, *d: x.permute(*d))((x @ wq).reshape(B, Sq, Hq, Dh), 0, 2, 1, 3)
        k = (lambda x, n, axis: torch.repeat_interleave(x, n, dim=axis))(k_cache[:, :, Sk - W:, :], rep, axis=1)
        v = (lambda x, n, axis: torch.repeat_interleave(x, n, dim=axis))(v_cache[:, :, Sk - W:, :], rep, axis=1)
        scores = torch.einsum("bhqd,bhkd->bhqk", q, k) * (Dh ** -0.5)
        p = _softmax(scores, axis=-1)
        o = torch.einsum("bhqk,bhkd->bhqd", p, v)
        return (lambda x, *d: x.permute(*d))(o, 0, 2, 1, 3).reshape(B, Sq, Hq * Dh) @ wo

    def _B_ref(x, w1, w3, w2):
        gate = torch.einsum("bsd,df->bsf", x, w1)
        up = torch.einsum("bsd,df->bsf", x, w3)
        h = _silu(gate) * up
        out = torch.einsum("bsf,fd->bsd", h, w2)
        return out

    x = A_x
    xn = _layernorm(x, axis=-1)
    s = _A_ref(xn, A_k_cache, A_v_cache, A_wq, A_wo)
    g = _silu(_B_ref(xn, B_w1, B_w3, B_w2))
    return x + s * g
```

```python
import re

class Regs:
    def __init__(self, prefix, start, limit):
        self.p = prefix; self.n = start; self.limit = limit; self.names = {}; self.hi = start
    def alloc(self, name, cnt=1, align=None):
        if align is None:
            align = 1 if cnt == 1 else (2 if (cnt == 2 or self.p == 'v') else 4)
        n = (self.n + align - 1)//align*align
        self.names[name] = (n, cnt)
        self.n = n + cnt
        self.hi = max(self.hi, self.n)
        assert self.n <= self.limit, (name, self.n)
        return R(self.p, n, cnt)
    def mark(self): return self.n
    def reset(self, m): self.n = m

class R:
    def __init__(self, p, n, cnt): self.p = p; self.n = n; self.cnt = cnt
    def __str__(self):
        return f"{self.p}{self.n}" if self.cnt == 1 else f"{self.p}[{self.n}:{self.n+self.cnt-1}]"
    def __format__(self, spec): return str(self)
    def __getitem__(self, i):
        if isinstance(i, slice):
            a = i.start or 0; b = i.stop if i.stop is not None else self.cnt
            assert 0 <= a < b <= self.cnt
            return R(self.p, self.n + a, b - a)
        assert 0 <= i < self.cnt
        return R(self.p, self.n + i, 1)

_reg_re = re.compile(r'\b([vsa])(\d+)\b|\b([vsa])\[(\d+):(\d+)\]|\b(vcc|exec|m0|scc)\b')
def regs_of(tok):
    out = []
    for m in _reg_re.finditer(tok):
        if m.group(1): out.append((m.group(1), int(m.group(2))))
        elif m.group(3): out += [(m.group(3), k) for k in range(int(m.group(4)), int(m.group(5))+1)]
        else: out.append((m.group(6), 0))
    return out

TRANS = ('v_exp_f32','v_log_f32','v_rcp_f32','v_rsq_f32','v_sqrt_f32')
def parse(line):
    s = line.split(';')[0].strip()
    if not s or s.endswith(':') or s.startswith('.'): return None
    parts = s.split(None, 1)
    op = parts[0]
    ops = [x.strip() for x in re.split(r',(?![^\[]*\])', parts[1])] if len(parts) > 1 else []
    return op, ops, s

def check_hazards(lines):
    hist = []
    problems = []
    for ln, line in enumerate(lines):
        p = parse(line)
        if p is None: continue
        op, ops, s = p
        base = re.sub(r'_(e32|e64|dpp|sdwa)$', '', op)
        isv = op.startswith('v_')
        mfma = op.startswith('v_mfma')
        dpp = ('row_' in s or 'quad_perm' in s) and isv
        perml = op.startswith('v_permlane')
        rdl = base in ('v_readfirstlane_b32','v_readlane_b32')
        vmem = op.startswith(('global_','buffer_','flat_'))
        ds = op.startswith('ds_')
        writes = []; reads = []
        if isv:
            if base.startswith('v_cmp'):
                writes = regs_of(ops[0]); reads = sum((regs_of(o) for o in ops[1:]), [])
            elif perml:
                writes = regs_of(ops[0]) + regs_of(ops[1]); reads = list(writes)
            else:
                writes = regs_of(ops[0]); reads = sum((regs_of(o) for o in ops[1:]), [])
                if base in ('v_fmac_f32','v_dot2c_f32_bf16') or dpp: reads += regs_of(ops[0])
        elif vmem:
            if 'load' in op and 'lds' not in op:
                writes = regs_of(ops[0]); reads = sum((regs_of(o) for o in ops[1:]), [])
            else:
                reads = sum((regs_of(o) for o in ops), [])
            if '_lds_' in op or ' lds' in s: reads.append(('m0',0))
        elif ds:
            if 'read' in op: writes = regs_of(ops[0]); reads = sum((regs_of(o) for o in ops[1:]), [])
            else: reads = sum((regs_of(o) for o in ops), [])
        elif op.startswith('s_'):
            if op.startswith(('s_cmp','s_cbranch','s_branch','s_waitcnt','s_barrier','s_nop','s_endpgm','s_sleep','s_setprio','s_bitcmp')):
                reads = sum((regs_of(o) for o in ops), [])
            else:
                writes = regs_of(ops[0]); reads = sum((regs_of(o) for o in ops[1:]), [])
        dist = 0
        for (hop, hw, hr, hs, hwt, hln) in reversed(hist):
            hv = hop.startswith('v_'); hm = hop.startswith('v_mfma')
            hbase = re.sub(r'_(e32|e64|dpp|sdwa)$', '', hop)
            need = 0; why = ''
            wv = set(x for x in hw if x[0] == 'v'); wsg = set(x for x in hw if x[0] in ('s','vcc'))
            rset = set(reads); wset = set(writes)
            if hv and not hm:
                if dpp and wv & rset: need, why = 2, 'valu->dpp'
                if perml and wv & rset: need, why = 2, 'valu->permlane'
                if rdl and wv & rset: need, why = max(need,1), 'valu->readlane'
                if mfma and wv & rset: need, why = 2, 'valu->mfma'
                if hbase in TRANS and isv and base not in TRANS and wv & rset: need, why = max(need,1), 'trans->valu'
                if isv and wsg & rset: need, why = max(need,2), 'valu sgpr->valu'
                if vmem and wsg & rset: need, why = 5, 'valu sgpr->vmem'
            if hm:
                D = wv
                if mfma:
                    c = set(regs_of(ops[3])); ab = set(regs_of(ops[1]) + regs_of(ops[2]))
                    if D & ab: need, why = 8, 'mfma D->mfma AB'
                    elif D & c and D != c: need, why = 6, 'mfma D->mfma C overlap'
                elif (isv or vmem or ds) and (D & (rset | wset)): need, why = 8, 'mfma D->valu/mem'
                hops = parse(hs)[1]
                hc = set(regs_of(hops[3]))
                if isv and not mfma and hc & wset: need, why = max(need,3), 'mfma C WAR'
            if hop.startswith('s_') and ('m0',0) in hw and ('m0',0) in rset and vmem: need, why = 1, 'm0->dma'
            if hop.startswith(('global_store_dwordx4','global_store_dwordx3','buffer_store_dwordx4')) and isv:
                hops = parse(hs)[1]
                if set(regs_of(hops[1])) & wset: need, why = 2, 'store data WAR'
            if need > dist:
                problems.append(f"line {ln+1}: '{s}' needs {need} wait states after line {hln+1} '{hs}' ({why}), has {dist}")
            dist += hwt
            if dist >= 12: break
        wt = 1
        if op == 's_nop': wt = int(ops[0]) + 1
        hist.append((op, writes, reads, s, wt, ln))
    return problems
```

```python
import sys
from asmlib import *

KNAME = "recurrent_scan__sliding_block_cached__glu_gated_swiglu__decode_kernel"

L_WQ, L_W1, L_W3, L_VV, L_WO, L_W2 = 0, 16384, 24576, 32768, 65536, 81920
L_XN = 90112; XN_ST = 1088
L_ZR = L_XN + 4*XN_ST
L_QL = L_ZR + 1024; QL_ST = 320
L_PL = L_QL + 4*QL_ST
L_SL = L_PL + 1024
L_ML = L_SL + 256
L_OL = L_ML + 64; OL_ST = 192
L_HL = L_OL + 4*OL_ST
L_END = L_HL + 256
W_EP = 0
W_Q1 = 4096
W_H1 = W_Q1 + 262144
W_O2 = W_H1 + 458752
W_P3 = W_O2 + 524288
W_TS = W_P3 + 1048576
EP_INC = 0x9E3779B1

def gen(diag=False, nt="nt", xflags="", prefetch=True, header=None, opts=None):
    opts = opts or {}
    L = []
    def A(s): L.append("  " + s)
    def LB(s): L.append(s + ":")
    def C(s): L.append("  ; " + s)
    S = Regs('s', 32, 100)
    sTAG = S.alloc('tag'); sT = [S.alloc(f't{k}') for k in range(4)]
    sW = S.alloc('w'); sB = S.alloc('b'); sSp = S.alloc('sp'); sCNT = S.alloc('cnt')
    sA = S.alloc('a', 2); sBb = S.alloc('bb', 2); sC = S.alloc('c', 2); sD = S.alloc('d', 2)
    sM = [S.alloc(f'm{k}', 2) for k in range(4)]
    st = [S.alloc(f'tmp{k}') for k in range(6)]
    sHI = S.alloc('hi')
    TS0 = 68
    pX, pK, pV, pWQ, pWO, pW1, pW3, pW2, pOUT, pWS = ("s[8:9]","s[10:11]","s[12:13]","s[14:15]","s[16:17]","s[20:21]","s[22:23]","s[24:25]","s[26:27]","s[30:31]")
    nts = [0]
    def TS(k):
        if diag:
            A(f"s_memrealtime s[{TS0+2*k}:{TS0+2*k+1}]")
    def TSDUMP(n):
        if diag:
            A("s_waitcnt lgkmcnt(0)")
            A(f"s_lshl_b32 {st[0]}, s2, 3")
            A(f"s_add_u32 {st[0]}, {st[0]}, s3")
            A(f"s_lshl_b32 {st[0]}, {st[0]}, 6")
            A(f"s_add_u32 {st[0]}, {st[0]}, {W_TS}")
            A("s_mov_b64 exec, 1")
            A(f"v_mov_b32 v2, {st[0]}")
            for k in range(n):
                A(f"v_mov_b32 v3, s{TS0+2*k}")
                A(f"global_store_dword v2, v3, {pWS} offset:{4*k}")
    def add64(dst, src, off):
        lo = int(src[2:src.index(':')])
        A(f"s_add_u32 {dst[0]}, s{lo}, {off}")
        A(f"s_addc_u32 {dst[1]}, s{lo+1}, 0")
    def tagbytes():
        A(f"s_add_u32 {sTAG}, {sTAG}, {EP_INC:#x}")
        A(f"s_and_b32 {sT[0]}, {sTAG}, 0xff")
        A(f"s_bfe_u32 {sT[1]}, {sTAG}, 0x80008")
        A(f"s_bfe_u32 {sT[2]}, {sTAG}, 0x80010")
        A(f"s_lshr_b32 {sT[3]}, {sTAG}, 24")

    hdr = header or []
    L += hdr
    L.append(f"; @launch grid=(256,1,1) block=(512,1,1) lds={L_END}")
    L.append('.amdgcn_target "amdgcn-amd-amdhsa--gfx950"')
    L.append(".text")
    L.append(f".globl {KNAME}")
    L.append(".p2align 12")
    L.append(".fill 832, 4, 0xbf800000")
    L.append(".p2align 8")
    L.append(f".type {KNAME},@function")
    L.append(f"{KNAME}:")
    LB("L_entry")
    TS(0)
    A("s_load_dwordx16 s[8:23], s[0:1], 0")
    A("s_load_dwordx8 s[24:31], s[0:1], 64")
    A("s_cmp_ge_u32 s2, 256")
    A("s_cbranch_scc1 L_end")
    A("v_lshrrev_b32 v1, 6, v0")
    A("v_and_b32 v0, 63, v0")
    A("v_readfirstlane_b32 s3, v1")
    A("s_and_b32 s4, s2, 7")
    A("s_lshr_b32 s5, s2, 3")
    A("v_lshrrev_b32 v1, 4, v0")
    A("v_and_b32 v2, 15, v0")
    A("s_cmp_ge_u32 s3, 4")
    A("s_cbranch_scc1 L_Q")
    A("s_cmp_eq_u32 s3, 3")
    A("s_cbranch_scc1 L_P3")

    V = Regs('v', 3, 256)
    vE = V.alloc('e'); vO = V.alloc('o'); vt = [V.alloc(f't{k}') for k in range(4)]
    vTR = [V.alloc(f'tr{k}') for k in range(4)]
    vXA = [V.alloc(f'xa{k}') for k in range(4)]
    vPA = V.alloc('pa'); vFF = V.alloc('ff')
    vD = V.alloc('d', 4, 4)
    vXB = V.alloc('xb', 64, 4)
    vW = V.alloc('w', 64, 4)
    sRB, sN, sLB, sK0, sPUB = st[0], st[1], st[2], st[3], st[4]
    C("P0: wq tile 128 rows x 64 cols; P1/P2: w1/w3 tile 64 rows x 64 cols")
    A("s_cmp_eq_u32 s3, 0")
    A("s_cbranch_scc0 L_P12")
    A(f"s_movk_i32 {sRB}, 0x2000")
    A(f"s_mov_b32 {sN}, 8")
    A(f"s_mov_b32 {sLB}, {L_WQ}")
    A(f"s_lshr_b32 {st[5]}, s5, 3")
    A(f"s_lshl_b32 {sK0}, {st[5]}, 8")
    A(f"s_and_b32 {sW}, s5, 7")
    A(f"s_lshl_b32 {sPUB}, s4, 15")
    A(f"s_lshl_b32 {sB}, {st[5]}, 11")
    A(f"s_add_u32 {sPUB}, {sPUB}, {sB}")
    A(f"s_lshl_b32 {sB}, {sW}, 8")
    A(f"s_add_u32 {sPUB}, {sPUB}, {sB}")
    A(f"s_add_u32 {sPUB}, {sPUB}, {W_Q1}")
    A(f"s_lshl_b32 {st[5]}, {st[5]}, 20")
    A(f"s_lshl_b32 {sB}, s4, 10")
    A(f"s_add_u32 {st[5]}, {st[5]}, {sB}")
    A(f"s_lshl_b32 {sB}, {sW}, 7")
    A(f"s_add_u32 {st[5]}, {st[5]}, {sB}")
    A(f"s_movk_i32 {sSp}, 0x2000")
    A("s_waitcnt lgkmcnt(0)")
    add64(sA, pWQ, st[5])
    A("s_branch L_Pld")
    LB("L_P12")
    A("s_cmp_ge_u32 s5, 28")
    A("s_cbranch_scc1 L_end")
    A(f"s_movk_i32 {sRB}, 3584")
    A(f"s_mov_b32 {sN}, 4")
    A(f"s_lshl_b32 {sLB}, s3, 13")
    A(f"s_add_u32 {sLB}, {sLB}, 8192")
    A(f"s_lshl_b32 {sK0}, s4, 7")
    A(f"s_sub_u32 {sK0}, {sK0}, 128")
    A(f"s_mul_i32 {sPUB}, s3, 229376")
    A(f"s_mul_i32 {sB}, s4, 7168")
    A(f"s_add_u32 {sPUB}, {sPUB}, {sB}")
    A(f"s_lshl_b32 {sB}, s5, 8")
    A(f"s_add_u32 {sPUB}, {sPUB}, {sB}")
    A(f"s_add_u32 {sPUB}, {sPUB}, {W_H1 - 229376}")
    A(f"s_mul_i32 {st[5]}, s4, {64*3584}")
    A(f"s_lshl_b32 {sB}, s5, 7")
    A(f"s_add_u32 {st[5]}, {st[5]}, {sB}")
    A(f"s_mov_b32 {sSp}, 57344")
    A("s_cmp_eq_u32 s3, 1")
    A("s_waitcnt lgkmcnt(0)")
    A(f"s_cselect_b64 {sA}, {pW1}, {pW3}")
    A(f"s_add_u32 {sA[0]}, {sA[0]}, {st[5]}")
    A(f"s_addc_u32 {sA[1]}, {sA[1]}, 0")
    A("s_barrier")
    LB("L_Pld")
    A(f"v_lshrrev_b32 {vt[0]}, 3, v0")
    A(f"v_mul_u32_u24 {vE}, {sRB}, {vt[0]}")
    A(f"v_and_b32 {vt[0]}, 1, v1")
    A(f"v_lshlrev_b32 {vt[0]}, 1, {vt[0]}")
    A(f"v_and_b32 {vt[1]}, 7, v0")
    A(f"v_xor_b32 {vt[0]}, {vt[0]}, {vt[1]}")
    A(f"v_lshl_add_u32 {vE}, {vt[0]}, 4, {vE}")
    A(f"v_xor_b32 {vO}, 64, {vE}")
    A(f"s_lshl_b32 {sB}, {sRB}, 3")
    A(f"v_add_u32 {vO}, {sB}, {vO}")
    A(f"s_lshl_b32 {sB}, {sRB}, 4")
    A(f"s_mov_b32 m0, {sLB}")
    A(f"s_load_dword {sTAG}, {pWS}, {W_EP}")
    LB("L_Ploop")
    A(f"global_load_lds_dwordx4 {vE}, {sA} {nt}")
    A("s_addk_i32 m0, 0x400")
    A(f"v_add_u32 {vE}, {sB}, {vE}")
    A(f"global_load_lds_dwordx4 {vO}, {sA} {nt}")
    A("s_addk_i32 m0, 0x400")
    A(f"v_add_u32 {vO}, {sB}, {vO}")
    A(f"s_sub_u32 {sN}, {sN}, 1")
    A(f"s_cmp_lg_u32 {sN}, 0")
    A("s_cbranch_scc1 L_Ploop")
    TS(1)
    A("s_branch L_Pcomp")

    VQ = Regs('v', 4, 256)
    q = {}
    def qa(n, c=1, al=None): q[n] = VQ.alloc(n, c, al); return q[n]
    qt = [qa(f't{k}') for k in range(6)]
    qKO = qa('ko'); qVE = qa('ve'); qVO = qa('vo'); qWE = qa('we'); qWO = qa('wo')
    qQP = qa('qp'); qX = qa('x'); qFF = qa('ff')
    qTRa = qa('tra'); qTRb = qa('trb')
    qPBA = [qa(f'pba{k}') for k in range(4)]
    qOA = [qa(f'oa{k}') for k in range(2)]; qHA = [qa(f'ha{k}') for k in range(2)]
    qQW = qa('qw'); qQR = qa('qr'); qPW = qa('pw'); qSW = qa('sw'); qMW = qa('mw'); qSR = qa('sr'); qMR = qa('mr')
    qOPUB = qa('opub'); qOP = qa('op'); qHP = qa('hp'); qHP2 = qa('hp2'); qOW = qa('ow'); qHW = qa('hw'); qP3 = qa('p3')
    qKR = qa('kr', 32, 4); qKF = qa('kf', 32, 4)
    qQ = qa('q', 8, 4); qQB = qa('qb', 16, 4); qS = qa('s', 8, 4); qP = qa('p', 4, 4)
    qVT = qa('vt', 32, 4); qPB = qa('pb', 16, 4); qD0 = qa('d0', 4, 4); qD1 = qa('d1', 4, 4)
    qL4 = qa('l4', 4, 4); qG = qa('g', 4, 4)
    qH = qa('h', 8, 4); qO = qa('o', 8, 4)
    LB("L_Q")
    A(f"s_sub_u32 {sW}, s3, 4")
    A(f"s_lshr_b32 {sB}, s5, 3")
    A(f"s_and_b32 {sSp}, s5, 7")
    A(f"s_lshl_b32 {st[0]}, {sB}, 3")
    A(f"s_add_u32 {st[0]}, {st[0]}, s4")
    A(f"s_lshl_b32 {st[0]}, {st[0]}, 5")
    A(f"s_add_u32 {st[0]}, {st[0]}, {sSp}")
    A(f"s_lshl_b32 {st[0]}, {st[0]}, 2")
    A(f"s_add_u32 {st[0]}, {st[0]}, {sW}")
    A(f"s_lshl_b32 {st[0]}, {st[0]}, 13")
    A(f"s_add_u32 {st[0]}, {st[0]}, {786432 + 4096}")
    A(f"v_lshrrev_b32 {qt[0]}, 1, v2")
    A(f"v_lshlrev_b32 {qKO}, 9, {qt[0]}")
    A(f"v_lshl_add_u32 {qKO}, v1, 5, {qKO}")
    A(f"v_and_b32 {qt[0]}, 1, v0")
    A(f"v_lshl_add_u32 {qKO}, {qt[0]}, 4, {qKO}")
    A("s_waitcnt lgkmcnt(0)")
    add64(sA, pK, st[0])
    add64(sBb, pV, st[0])
    for T in range(2):
        for hf in range(2):
            for ab in range(2):
                r = qKR[(T*4+hf*2+ab)*4:(T*4+hf*2+ab)*4+4]
                A(f"global_load_dwordx4 {r}, {qKO}, {sA} offset:{T*4096-4096+hf*128+ab*256} {nt}")
    A(f"s_load_dword {sTAG}, {pWS}, {W_EP}")
    TS(1)
    A("s_branch L_Q2")

    VL = Regs('v', 3, 256)
    lt = [VL.alloc(f't{k}') for k in range(4)]
    lA = VL.alloc('acc', 4, 2); lM = VL.alloc('m', 2, 2); lR = VL.alloc('r', 2, 2)
    lZ = VL.alloc('z', 4, 4); lX = VL.alloc('x', 16, 4); lF = VL.alloc('f', 32, 4); lD = VL.alloc('dd', 32, 4)
    LB("L_P3")
    A(f"v_lshlrev_b32 {lt[0]}, 4, v0")
    if prefetch:
        A(f"s_getpc_b64 {sA}")
        LB("L_pc")
        A(f"s_lshl_b32 {st[0]}, s5, 10")
        A(f"s_cmp_ge_u32 {st[0]}, L_codeend-L_pc")
        A("s_cbranch_scc1 L_nopf")
        A(f"v_add_u32 {lt[1]}, {st[0]}, {lt[0]}")
        A(f"global_load_dwordx4 {lZ}, {lt[1]}, {sA}")
        LB("L_nopf")
    A(f"v_lshlrev_b32 {lt[1]}, 10, v1")
    A(f"v_lshl_add_u32 {lt[1]}, v2, 4, {lt[1]}")
    A("s_waitcnt lgkmcnt(0)")
    for u in range(4):
        A(f"global_load_dwordx4 {lX[4*u:4*u+4]}, {lt[1]}, {pX} offset:{u*256} {xflags}")
    TS(1)
    A(f"v_mov_b32 {lD[0]}, 0"); A(f"v_mov_b32 {lD[1]}, 0"); A(f"v_mov_b32 {lD[2]}, 0"); A(f"v_mov_b32 {lD[3]}, 0")
    A(f"v_add_u32 {lt[0]}, {L_W2 + 7168}, {lt[0]}")
    A(f"ds_write_b128 {lt[0]}, {lD[0:4]}")
    A(f"ds_write_b128 {lt[0]}, {lD[0:4]} offset:{L_ZR - L_W2 - 7168}")
    A(f"s_mov_b32 {sHI}, 0xffff0000")
    A(f"v_mul_u32_u24 {lt[2]}, {XN_ST}, v1")
    A(f"v_lshl_add_u32 {lt[2]}, v2, 4, {lt[2]}")
    A(f"v_add_u32 {lt[2]}, {L_XN}, {lt[2]}")
    A("s_waitcnt vmcnt(0)")
    TS(2)
    for k in range(16):
        A(f"v_lshlrev_b32 {lF[2*k]}, 16, {lX[k]}")
        A(f"v_and_b32 {lF[2*k+1]}, {sHI}, {lX[k]}")
    A(f"v_pk_add_f32 {lA[0:2]}, {lF[0:2]}, {lF[2:4]}")
    A(f"v_pk_add_f32 {lA[2:4]}, {lF[4:6]}, {lF[6:8]}")
    for k in range(4, 16):
        a = lA[0:2] if k % 2 == 0 else lA[2:4]
        A(f"v_pk_add_f32 {a}, {a}, {lF[2*k:2*k+2]}")
    A(f"v_pk_add_f32 {lA[0:2]}, {lA[0:2]}, {lA[2:4]}")
    A(f"v_add_f32 {lM[0]}, {lA[0]}, {lA[1]}")
    def rowsum(r):
        for sh in (1, 2, 4, 8):
            A("s_nop 1")
            A(f"v_add_f32_dpp {r}, {r}, {r} row_ror:{sh} row_mask:0xf bank_mask:0xf")
    rowsum(lM[0])
    A(f"v_mul_f32 {lM[0]}, 0x3b000000, {lM[0]}")
    for k in range(16):
        A(f"v_pk_add_f32 {lD[2*k:2*k+2]}, {lF[2*k:2*k+2]}, {lM} op_sel_hi:[1,0] neg_lo:[0,1] neg_hi:[0,1]")
    A(f"v_pk_mul_f32 {lA[0:2]}, {lD[0:2]}, {lD[0:2]}")
    A(f"v_pk_mul_f32 {lA[2:4]}, {lD[2:4]}, {lD[2:4]}")
    for k in range(2, 16):
        a = lA[0:2] if k % 2 == 0 else lA[2:4]
        A(f"v_pk_fma_f32 {a}, {lD[2*k:2*k+2]}, {lD[2*k:2*k+2]}, {a}")
    A(f"v_pk_add_f32 {lA[0:2]}, {lA[0:2]}, {lA[2:4]}")
    A(f"v_add_f32 {lR[0]}, {lA[0]}, {lA[1]}")
    rowsum(lR[0])
    A(f"v_mul_f32 {lR[0]}, 0x3b000000, {lR[0]}")
    C("bf16 roundings of mean, var, var+eps, sqrt as the reference does")
    A(f"v_cvt_pk_bf16_f32 {lM[0]}, {lM[0]}, {lR[0]}")
    A(f"v_and_b32 {lR[0]}, {sHI}, {lM[0]}")
    A(f"v_lshlrev_b32 {lM[0]}, 16, {lM[0]}")
    A(f"v_add_f32 {lR[0]}, 0x3727c5ac, {lR[0]}")
    A(f"v_cvt_pk_bf16_f32 {lR[0]}, {lR[0]}, {lR[0]}")
    A(f"v_and_b32 {lR[0]}, {sHI}, {lR[0]}")
    A(f"v_sqrt_f32 {lR[0]}, {lR[0]}")
    A("s_nop 0")
    A(f"v_cvt_pk_bf16_f32 {lR[0]}, {lR[0]}, {lR[0]}")
    A(f"v_and_b32 {lR[0]}, {sHI}, {lR[0]}")
    A(f"v_rcp_f32 {lR[0]}, {lR[0]}")
    A("s_nop 0")
    A(f"v_mul_f32 {lM[0]}, {lM[0]}, {lR[0]}")
    for k in range(16):
        A(f"v_pk_fma_f32 {lD[2*k:2*k+2]}, {lF[2*k:2*k+2]}, {lR}, {lM} op_sel_hi:[1,0,0] neg_lo:[0,0,1] neg_hi:[0,0,1]")
        A(f"v_cvt_pk_bf16_f32 {lX[k]}, {lD[2*k]}, {lD[2*k+1]}")
        if k % 4 == 3:
            A(f"ds_write_b128 {lt[2]}, {lX[k-3:k+1]} offset:{(k//4)*256}")
    A("s_waitcnt lgkmcnt(0)")
    TS(3)
    A("s_barrier")
    TSDUMP(4)
    A("s_endpgm")

    LB("L_Pcomp")
    A(f"v_lshrrev_b32 {vt[0]}, 2, v2")
    A(f"v_lshl_add_u32 {vt[0]}, v1, 3, {vt[0]}")
    A(f"v_lshlrev_b32 {vTR[0]}, 7, {vt[0]}")
    A(f"v_and_b32 {vt[0]}, 3, v0")
    A(f"v_lshl_add_u32 {vTR[0]}, {vt[0]}, 3, {vTR[0]}")
    A(f"v_bfe_u32 {vt[1]}, v0, 3, 2")
    A(f"v_lshl_add_u32 {vTR[0]}, {vt[1]}, 5, {vTR[0]}")
    A("s_cmp_eq_u32 s3, 0")
    A(f"s_cselect_b32 {sN}, 0, 8192")
    A(f"s_sub_u32 {sLB}, {sLB}, {sN}")
    A(f"v_add_u32 {vTR[0]}, {sLB}, {vTR[0]}")
    for k in range(1, 4):
        A(f"v_xor_b32 {vTR[k]}, {32*k}, {vTR[0]}")
    A(f"v_mul_u32_u24 {vt[1]}, {XN_ST}, {vt[0]}")
    A(f"v_lshl_add_u32 {vt[1]}, v1, 4, {vt[1]}")
    A(f"s_add_u32 {sK0}, {sK0}, {L_XN}")
    A(f"v_add_u32 {vt[1]}, {sK0}, {vt[1]}")
    A(f"v_bfe_u32 {vt[2]}, v0, 2, 2")
    A(f"v_mov_b32 {vt[3]}, {L_ZR}")
    for k in range(4):
        A(f"v_cmp_eq_u32 vcc, {k}, {vt[2]}")
        A("s_nop 1")
        A(f"v_cndmask_b32 {vXA[k]}, {vt[3]}, {vt[1]}, vcc")
    A(f"v_mul_u32_u24 {vPA}, {sSp}, {vt[0]}")
    A(f"v_lshl_add_u32 {vPA}, {vt[2]}, 6, {vPA}")
    A(f"v_lshl_add_u32 {vPA}, v1, 4, {vPA}")
    A(f"v_add_u32 {vPA}, {sPUB}, {vPA}")
    A(f"v_mov_b32 {vFF}, 0xffffff00")
    for k in range(4): A(f"v_mov_b32 {vD[k]}, 0")
    A("s_waitcnt lgkmcnt(0)")
    tagbytes()
    A("s_cmp_eq_u32 s3, 0")
    A("s_cbranch_scc0 L_PB")
    A("s_barrier")
    TS(2)
    def pblock(kss, first):
        for ks in kss:
            for t in range(4):
                A(f"ds_read_b128 {vXB[(ks*4+t)*4:(ks*4+t)*4+4]}, {vXA[t]} offset:{ks*64}")
    def pcomp(kss):
        for ks in kss:
            for nb in range(4):
                for T in range(2):
                    o = (ks*4+nb)*4 + T*2
                    A(f"ds_read_b64_tr_b16 {vW[o:o+2]}, {vTR[nb]} offset:{ks*4096+T*512}")
            A("s_waitcnt lgkmcnt(0)")
            for nb in range(4):
                o = (ks*4+nb)*4
                A(f"v_mfma_f32_16x16x32_bf16 {vD}, {vW[o:o+4]}, {vXB[o:o+4]}, {vD}")
    pblock([0, 1], True)
    A("s_waitcnt vmcnt(8)")
    pcomp([0, 1])
    LB("L_PB")
    pblock([2, 3], False)
    A("s_waitcnt vmcnt(0)")
    TS(3)
    pcomp([2, 3])
    A("s_nop 7")
    for k in range(4):
        A(f"v_and_or_b32 {vD[k]}, {vD[k]}, {vFF}, {sT[k]}")
    A(f"global_store_dwordx4 {vPA}, {vD}, {pWS} sc1")
    TS(4)
    TSDUMP(5)
    A("s_endpgm")

    LB("L_Q2")
    C("addresses")
    A(f"v_lshlrev_b32 {qt[0]}, 1, v1")
    A(f"v_xor_b32 {qt[0]}, {qt[0]}, v2")
    A(f"v_lshlrev_b32 {qt[0]}, 4, {qt[0]}")
    A(f"v_lshl_add_u32 {qVE}, v1, 8, {qt[0]}")
    A(f"v_xor_b32 {qVO}, 0x80, {qVE}")
    A(f"v_lshl_add_u32 {qWE}, v1, 10, {qt[0]}")
    A(f"v_xor_b32 {qWO}, 0x80, {qWE}")
    A(f"v_add_u32 {qWO}, 3072, {qWO}")
    A(f"s_lshr_b32 {st[1]}, s5, 2")
    A(f"s_lshl_b32 {st[2]}, s4, 3")
    A(f"s_add_u32 {st[2]}, {st[2]}, {st[1]}")
    A(f"s_and_b32 {st[3]}, s5, 3")
    A(f"s_lshl_b32 {st[4]}, {st[3]}, 8")
    A(f"s_lshl_b32 {st[0]}, {st[2]}, 2")
    A(f"s_add_u32 {st[0]}, {st[0]}, {sW}")
    A(f"s_lshl_b32 {st[0]}, {st[0]}, 14")
    A(f"s_add_u32 {st[0]}, {st[0]}, {st[4]}")
    add64(sC, pWO, st[0])
    A(f"s_mul_i32 {st[0]}, {st[2]}, {28*1024}")
    A(f"s_lshl_b32 {st[5]}, {sW}, 13")
    A(f"s_add_u32 {st[0]}, {st[0]}, {st[5]}")
    A(f"s_add_u32 {st[0]}, {st[0]}, {st[4]}")
    add64(sD, pW2, st[0])
    A(f"s_lshl_b32 {st[0]}, s4, 2")
    A(f"s_add_u32 {st[0]}, {st[0]}, {sB}")
    A(f"s_lshl_b32 {st[4]}, {st[0]}, 13")
    A(f"s_lshl_b32 {st[5]}, {sW}, 9")
    A(f"s_add_u32 {st[4]}, {st[4]}, {st[5]}")
    A(f"s_add_u32 {st[4]}, {st[4]}, {W_Q1 + 2048}")
    A(f"v_lshrrev_b32 {qt[1]}, 5, v0")
    A(f"v_and_b32 {qt[2]}, 31, v0")
    A(f"v_lshlrev_b32 {qQP}, 4, {qt[2]}")
    A(f"v_lshl_add_u32 {qQP}, {qt[1]}, 11, {qQP}")
    A(f"v_add_u32 {qQP}, {st[4]}, {qQP}")
    A(f"s_mul_i32 {st[4]}, {sW}, {QL_ST}")
    A(f"s_add_u32 {st[4]}, {st[4]}, {L_QL}")
    A(f"v_lshlrev_b32 {qQW}, 3, {qt[2]}")
    A(f"v_lshl_add_u32 {qQW}, {qt[1]}, 2, {qQW}")
    A(f"v_add_u32 {qQW}, {st[4]}, {qQW}")
    A(f"s_lshl_b32 {st[0]}, {st[0]}, 14")
    A(f"s_lshl_b32 {st[4]}, {sSp}, 9")
    A(f"s_add_u32 {st[0]}, {st[0]}, {st[4]}")
    A(f"s_lshl_b32 {st[4]}, {sW}, 7")
    A(f"s_add_u32 {st[0]}, {st[0]}, {st[4]}")
    A(f"s_add_u32 {st[0]}, {st[0]}, {W_O2}")
    A(f"v_and_b32 {qt[1]}, 3, v0")
    A(f"v_bfe_u32 {qt[2]}, v0, 2, 2")
    A(f"v_lshlrev_b32 {qOPUB}, 12, {qt[1]}")
    A(f"v_lshl_add_u32 {qOPUB}, {qt[2]}, 6, {qOPUB}")
    A(f"v_lshl_add_u32 {qOPUB}, v1, 4, {qOPUB}")
    A(f"v_add_u32 {qOPUB}, {st[0]}, {qOPUB}")
    A(f"s_lshl_b32 {st[0]}, {sW}, 13")
    A(f"s_add_u32 m0, {st[0]}, {L_VV + 4096}")
    A("s_barrier")
    TS(2)
    for u in range(8):
        A(f"global_load_lds_dwordx4 {qVO if u & 1 else qVE}, {sBb} offset:{u*1024-4096} {nt}")
    A(f"s_lshl_b32 {st[0]}, {sW}, 11")
    A(f"s_add_u32 m0, {st[0]}, {L_W2}")
    A(f"s_cmp_eq_u32 {sW}, 3")
    A("s_cbranch_scc1 L_now2b")
    A(f"global_load_lds_dwordx4 {qWO}, {sD} offset:1024 {nt}")
    LB("L_now2b")
    A(f"global_load_dwordx4 {qQ[0:4]}, {qQP}, {pWS} offset:-2048 sc1")
    A(f"global_load_dwordx4 {qQ[4:8]}, {qQP}, {pWS} offset:2048 sc1")
    A(f"global_load_lds_dwordx4 {qWE}, {sD} {nt}")
    A(f"s_lshl_b32 {st[0]}, {sW}, 12")
    A(f"s_add_u32 m0, {st[0]}, {L_WO}")
    A("s_nop 0")
    A(f"global_load_lds_dwordx4 {qWE}, {sC} {nt}")
    A(f"global_load_lds_dwordx4 {qWO}, {sC} offset:1024 {nt}")
    A(f"v_add_u32 {qWE}, 6144, {qWE}")
    A(f"v_add_u32 {qWO}, 6144, {qWO}")
    A(f"global_load_lds_dwordx4 {qWE}, {sC} offset:2048 {nt}")
    A(f"global_load_lds_dwordx4 {qWO}, {sC} offset:3072 {nt}")
    TS(3)
    C("more addresses (qt1 = hd, qt2 = t)")
    for k in range(4):
        A(f"s_mov_b32 {sM[k][0]}, {0x000f000f << (4*k):#x}")
        A(f"s_mov_b32 {sM[k][1]}, {0x000f000f << (4*k):#x}")
    A(f"v_lshrrev_b32 {qt[0]}, 2, v0")
    A(f"v_and_b32 {qt[3]}, 7, {qt[0]}")
    A(f"s_lshl_b32 {st[0]}, {sW}, 1")
    A(f"v_xor_b32 {qt[3]}, {st[0]}, {qt[3]}")
    A(f"v_lshlrev_b32 {qTRa}, 8, {qt[0]}")
    A(f"v_lshl_add_u32 {qTRa}, {qt[3]}, 5, {qTRa}")
    A(f"v_lshl_add_u32 {qTRa}, {qt[1]}, 3, {qTRa}")
    A(f"v_add_u32 {qTRa}, {L_VV}, {qTRa}")
    A(f"v_xor_b32 {qTRb}, 32, {qTRa}")
    A(f"v_mul_u32_u24 {qQR}, {QL_ST}, {qt[1]}")
    A(f"v_lshl_add_u32 {qQR}, v1, 5, {qQR}")
    A(f"v_add_u32 {qQR}, {L_QL}, {qQR}")
    A(f"v_lshlrev_b32 {qt[0]}, 6, {qt[1]}")
    A(f"v_lshl_add_u32 {qt[0]}, v1, 4, {qt[0]}")
    A(f"s_lshl_b32 {st[0]}, {sW}, 8")
    A(f"s_add_u32 {st[0]}, {st[0]}, {L_PL}")
    A(f"v_add_u32 {qPW}, {st[0]}, {qt[0]}")
    A(f"v_lshl_add_u32 {qt[3]}, {qt[2]}, 8, {qt[0]}")
    A(f"v_add_u32 {qt[3]}, {L_PL}, {qt[3]}")
    A(f"v_mov_b32 {qt[4]}, {L_ZR}")
    for k in range(4):
        A(f"v_cndmask_b32 {qPBA[k]}, {qt[4]}, {qt[3]}, {sM[k]}")
    A(f"v_add_u32 {qt[3]}, {L_HL}, {qt[0]}")
    A(f"v_cndmask_b32 {qHA[0]}, {qt[4]}, {qt[3]}, {sM[1]}")
    A(f"v_cndmask_b32 {qHA[1]}, {qt[4]}, {qt[3]}, {sM[3]}")
    A(f"v_lshl_add_u32 {qt[3]}, {qt[1]}, 7, {qt[0]}")
    A(f"v_add_u32 {qt[3]}, {L_OL}, {qt[3]}")
    A(f"v_cndmask_b32 {qOA[0]}, {qt[4]}, {qt[3]}, {sM[0]}")
    A(f"v_cndmask_b32 {qOA[1]}, {qt[4]}, {qt[3]}, {sM[2]}")
    A(f"v_and_b32 {qt[3]}, 15, v0")
    A(f"v_lshlrev_b32 {qSR}, 4, {qt[3]}")
    A(f"v_add_u32 {qSR}, {L_SL}, {qSR}")
    A(f"v_lshlrev_b32 {qMR}, 2, {qt[3]}")
    A(f"v_add_u32 {qMR}, {L_ML}, {qMR}")
    A(f"s_lshl_b32 {st[0]}, {sW}, 6")
    A(f"s_add_u32 {st[0]}, {st[0]}, {L_SL}")
    A(f"v_lshlrev_b32 {qSW}, 4, {qt[1]}")
    A(f"v_lshl_add_u32 {qSW}, v1, 2, {qSW}")
    A(f"v_add_u32 {qSW}, {st[0]}, {qSW}")
    A(f"s_lshl_b32 {st[0]}, {sW}, 4")
    A(f"s_add_u32 {st[0]}, {st[0]}, {L_ML}")
    A(f"v_lshlrev_b32 {qMW}, 2, {qt[1]}")
    A(f"v_add_u32 {qMW}, {st[0]}, {qMW}")
    A(f"s_lshl_b32 {st[0]}, {st[3]}, 18")
    A(f"s_lshl_b32 {st[4]}, {sW}, 14")
    A(f"s_add_u32 {st[0]}, {st[0]}, {st[4]}")
    A(f"s_lshl_b32 {st[4]}, {st[2]}, 6")
    A(f"s_add_u32 {st[0]}, {st[0]}, {st[4]}")
    A(f"s_add_u32 {st[0]}, {st[0]}, {W_P3}")
    A(f"v_lshlrev_b32 {qP3}, 16, {qt[1]}")
    A(f"v_bfe_u32 {qt[3]}, v0, 3, 1")
    A(f"v_lshl_add_u32 {qP3}, {qt[3]}, 13, {qP3}")
    A(f"v_lshrrev_b32 {qt[3]}, 5, v0")
    A(f"v_lshl_add_u32 {qP3}, {qt[3]}, 12, {qP3}")
    A(f"v_bfe_u32 {qt[3]}, v0, 2, 1")
    A(f"v_lshl_add_u32 {qP3}, {qt[3]}, 5, {qP3}")
    A(f"v_bfe_u32 {qt[3]}, v0, 4, 1")
    A(f"v_lshl_add_u32 {qP3}, {qt[3]}, 4, {qP3}")
    A(f"v_add_u32 {qP3}, {st[0]}, {qP3}")
    A(f"s_lshl_b32 {st[0]}, s4, 2")
    A(f"s_add_u32 {st[0]}, {st[0]}, {sW}")
    A(f"s_lshl_b32 {st[0]}, {st[0]}, 2")
    A(f"s_add_u32 {st[0]}, {st[0]}, {sB}")
    A(f"s_lshl_b32 {st[0]}, {st[0]}, 12")
    A(f"s_and_b32 {st[4]}, {st[1]}, 1")
    A(f"s_lshl_b32 {st[4]}, {st[4]}, 8")
    A(f"s_add_u32 {st[0]}, {st[0]}, {st[4]}")
    A(f"s_add_u32 {st[0]}, {st[0]}, {W_O2}")
    A(f"v_lshrrev_b32 {qt[3]}, 3, v0")
    A(f"v_and_b32 {qt[5]}, 7, v0")
    A(f"v_lshlrev_b32 {qOP}, 9, {qt[3]}")
    A(f"v_lshl_add_u32 {qOP}, {qt[5]}, 4, {qOP}")
    A(f"v_add_u32 {qOP}, {st[0]}, {qOP}")
    A(f"s_mul_i32 {st[0]}, {sW}, 57344")
    A(f"s_mul_i32 {st[4]}, {st[2]}, 112")
    A(f"s_add_u32 {st[0]}, {st[0]}, {st[4]}")
    A(f"s_add_u32 {st[0]}, {st[0]}, {W_H1}")
    A(f"v_mul_u32_u24 {qHP}, 7168, {qt[3]}")
    A(f"v_min_u32 {qt[3]}, 6, {qt[5]}")
    A(f"v_lshl_add_u32 {qHP}, {qt[3]}, 4, {qHP}")
    A(f"v_add_u32 {qHP}, {st[0]}, {qHP}")
    A(f"v_add_u32 {qHP2}, 229376, {qHP}")
    A(f"v_bfe_u32 {qt[3]}, v0, 2, 1")
    A(f"v_lshl_add_u32 {qt[3]}, {qt[3]}, 2, v1")
    A(f"v_lshl_add_u32 {qt[3]}, {qt[1]}, 3, {qt[3]}")
    A(f"v_lshlrev_b32 {qt[3]}, 1, {qt[3]}")
    A(f"s_lshl_b32 {st[0]}, {sW}, 6")
    A(f"s_add_u32 {st[0]}, {st[0]}, {L_HL}")
    A(f"v_add_u32 {qHW}, {st[0]}, {qt[3]}")
    A(f"s_mul_i32 {st[0]}, {sW}, {OL_ST}")
    A(f"s_add_u32 {st[0]}, {st[0]}, {L_OL}")
    A(f"v_bfe_u32 {qOW}, v0, 3, 1")
    A(f"v_lshl_add_u32 {qOW}, {qOW}, 6, {qt[3]}")
    A(f"v_add_u32 {qOW}, {st[0]}, {qOW}")
    A(f"v_mov_b32 {qFF}, 0xffffff00")
    A(f"s_mov_b32 {sHI}, 0xffff0000")
    A(f"s_mov_b32 {sCNT}, 0x40000")
    A("s_waitcnt lgkmcnt(0)")
    tagbytes()
    C("K fix-up")
    A(f"s_mov_b32 vcc_lo, 0x55555555")
    A(f"s_mov_b32 vcc_hi, 0x55555555")
    A("s_waitcnt vmcnt(15)")
    for pr in range(4):
        for r in range(4):
            A(f"v_cndmask_b32_dpp {qKF[pr*8+r]}, {qKR[pr*8+4+r]}, {qKR[pr*8+r]}, vcc quad_perm:[1,0,3,2] row_mask:0xf bank_mask:0xf")
    A("s_not_b64 vcc, vcc")
    for pr in range(4):
        for r in range(4):
            A(f"v_cndmask_b32_dpp {qKF[pr*8+4+r]}, {qKR[pr*8+r]}, {qKR[pr*8+4+r]}, vcc quad_perm:[1,0,3,2] row_mask:0xf bank_mask:0xf")
    TS(4)
    A("s_waitcnt vmcnt(5)")
    def tagcheck(regs, acc):
        first = True
        for k, r in enumerate(regs):
            if first:
                A(f"v_xor_b32 {acc}, {sT[k%4]}, {r}")
                first = False
            else:
                A(f"v_bitop3_b32 {acc}, {r}, {sT[k%4]}, {acc} bitop3:0xbe")
        A(f"v_and_b32 {acc}, 0xff, {acc}")
        A(f"v_cmp_ne_u32 vcc, 0, {acc}")
    LB("L_qchk")
    tagcheck([qQ[k] for k in range(8)], qt[0])
    A("s_cbranch_vccz L_qok")
    A(f"global_load_dwordx4 {qQ[0:4]}, {qQP}, {pWS} offset:-2048 sc1")
    A(f"global_load_dwordx4 {qQ[4:8]}, {qQP}, {pWS} offset:2048 sc1")
    A(f"s_sub_u32 {sCNT}, {sCNT}, 1")
    A("s_cbranch_scc1 L_end")
    A("s_waitcnt vmcnt(0)")
    A("s_branch L_qchk")
    LB("L_qok")
    TS(5)
    A(f"v_pk_add_f32 {qQ[0:2]}, {qQ[0:2]}, {qQ[4:6]}")
    A(f"v_pk_add_f32 {qQ[2:4]}, {qQ[2:4]}, {qQ[6:8]}")
    A("s_nop 1")
    A(f"v_permlane32_swap_b32 {qQ[0]}, {qQ[2]}")
    A(f"v_permlane32_swap_b32 {qQ[1]}, {qQ[3]}")
    A(f"v_pk_add_f32 {qQ[0:2]}, {qQ[0:2]}, {qQ[2:4]}")
    A(f"v_cvt_pk_bf16_f32 {qQ[0]}, {qQ[0]}, {qQ[1]}")
    A(f"ds_write_b32 {qQW}, {qQ[0]}")
    A("s_waitcnt lgkmcnt(0)")
    A("s_barrier")
    for s_ in range(4):
        A(f"ds_read_b128 {qQB[4*s_:4*s_+4]}, {qQR} offset:{(s_>>1)*128 + (s_&1)*16}")
    def vtr(ks):
        for x in range(2):
            for T in range(2):
                o = (ks*2+x)*4 + T*2
                A(f"ds_read_b64_tr_b16 {qVT[o:o+2]}, {qTRb if x else qTRa} offset:{ks*8192+T*4096}")
    vtr(0); vtr(1)
    A("s_waitcnt lgkmcnt(8)")
    for s_ in range(4):
        for T in range(2):
            kf = qKF[(T*2+(s_>>1))*8 + (s_&1)*4:(T*2+(s_>>1))*8 + (s_&1)*4 + 4]
            c = "0" if s_ == 0 else str(qS[4*T:4*T+4])
            A(f"v_mfma_f32_16x16x32_bf16 {qS[4*T:4*T+4]}, {kf}, {qQB[4*s_:4*s_+4]}, {c}")
    vtr(2); vtr(3)
    A(f"s_mov_b32 {sA[0]}, 0x3db504f3")
    A(f"s_mov_b32 {sA[1]}, 0x3db504f3")
    A(f"s_mov_b32 {st[0]}, 0x3fb8aa3b")
    C("scores: round to bf16, scale, round to bf16")
    for k in range(4):
        A(f"v_cvt_pk_bf16_f32 {qP[k]}, {qS[2*k]}, {qS[2*k+1]}")
    for k in range(4):
        A(f"v_lshlrev_b32 {qS[2*k]}, 16, {qP[k]}")
        A(f"v_and_b32 {qS[2*k+1]}, {sHI}, {qP[k]}")
    for k in range(4):
        A(f"v_pk_mul_f32 {qS[2*k:2*k+2]}, {qS[2*k:2*k+2]}, {sA}")
    for k in range(4):
        A(f"v_cvt_pk_bf16_f32 {qP[k]}, {qS[2*k]}, {qS[2*k+1]}")
    for k in range(4):
        A(f"v_lshlrev_b32 {qS[2*k]}, 16, {qP[k]}")
        A(f"v_and_b32 {qS[2*k+1]}, {sHI}, {qP[k]}")
    A(f"v_max3_f32 {qt[0]}, {qS[0]}, {qS[1]}, {qS[2]}")
    A(f"v_max3_f32 {qt[1]}, {qS[3]}, {qS[4]}, {qS[5]}")
    A(f"v_max3_f32 {qt[0]}, {qt[0]}, {qS[6]}, {qS[7]}")
    A(f"v_max_f32 {qt[0]}, {qt[0]}, {qt[1]}")
    A(f"v_mov_b32 {qt[1]}, {qt[0]}")
    A("s_nop 1")
    A(f"v_permlane16_swap_b32 {qt[0]}, {qt[1]}")
    A(f"v_max_f32 {qt[0]}, {qt[0]}, {qt[1]}")
    A(f"v_mov_b32 {qt[1]}, {qt[0]}")
    A("s_nop 1")
    A(f"v_permlane32_swap_b32 {qt[0]}, {qt[1]}")
    A(f"v_max_f32 {qt[0]}, {qt[0]}, {qt[1]}")
    A(f"v_mul_f32 {qt[0]}, {st[0]}, {qt[0]}")
    for k in range(8):
        A(f"v_fma_f32 {qS[k]}, {qS[k]}, {st[0]}, -{qt[0]}")
    for k in range(8):
        A(f"v_exp_f32 {qS[k]}, {qS[k]}")
    A("s_nop 0")
    for k in range(4):
        A(f"v_cvt_pk_bf16_f32 {qP[k]}, {qS[2*k]}, {qS[2*k+1]}")
    A(f"s_mov_b64 exec, {sM[0]}")
    A(f"ds_write_b128 {qPW}, {qP}")
    A(f"ds_write_b32 {qMW}, {qt[0]}")
    A(f"v_pk_add_f32 {qS[0:2]}, {qS[0:2]}, {qS[2:4]}")
    A(f"v_pk_add_f32 {qS[4:6]}, {qS[4:6]}, {qS[6:8]}")
    A(f"v_pk_add_f32 {qS[0:2]}, {qS[0:2]}, {qS[4:6]}")
    A(f"v_add_f32 {qS[0]}, {qS[0]}, {qS[1]}")
    A(f"ds_write_b32 {qSW}, {qS[0]}")
    A("s_mov_b64 exec, -1")
    A("s_waitcnt lgkmcnt(0)")
    A("s_barrier")
    for ks in range(4):
        A(f"ds_read_b128 {qPB[4*ks:4*ks+4]}, {qPBA[ks]}")
    A(f"ds_read_b32 {qt[0]}, {qMR}")
    A(f"ds_read_b128 {qL4}, {qSR}")
    A("s_waitcnt lgkmcnt(0)")
    for ks in range(4):
        for x in range(2):
            d = qD1 if x else qD0
            c = "0" if ks == 0 else str(d)
            o = (ks*2+x)*4
            A(f"v_mfma_f32_16x16x32_bf16 {d}, {qVT[o:o+4]}, {qPB[4*ks:4*ks+4]}, {c}")
            if ks == 0 and x == 0:
                A(f"v_max_f32_dpp {qt[1]}, {qt[0]}, {qt[0]} row_ror:4 row_mask:0xf bank_mask:0xf")
            if ks == 0 and x == 1:
                A(f"v_pk_add_f32 {qL4[0:2]}, {qL4[0:2]}, {qL4[2:4]}")
            if ks == 1 and x == 0:
                A(f"v_max_f32_dpp {qt[1]}, {qt[1]}, {qt[1]} row_ror:8 row_mask:0xf bank_mask:0xf")
                A(f"v_add_f32 {qL4[0]}, {qL4[0]}, {qL4[1]}")
            if ks == 1 and x == 1:
                A(f"v_sub_f32 {qt[0]}, {qt[0]}, {qt[1]}")
                A(f"v_exp_f32 {qt[0]}, {qt[0]}")
            if ks == 2 and x == 0:
                A(f"v_mul_f32 {qL4[0]}, {qL4[0]}, {qt[0]}")
            if ks == 2 and x == 1:
                A("s_nop 0")
                A(f"v_add_f32_dpp {qL4[0]}, {qL4[0]}, {qL4[0]} row_ror:4 row_mask:0xf bank_mask:0xf")
            if ks == 3 and x == 0:
                A("s_nop 0")
                A(f"v_add_f32_dpp {qL4[0]}, {qL4[0]}, {qL4[0]} row_ror:8 row_mask:0xf bank_mask:0xf")
    A(f"v_rcp_f32 {qL4[1]}, {qL4[0]}")
    A(f"v_log_f32 {qL4[2]}, {qL4[0]}")
    A("s_nop 0")
    A(f"v_mul_f32 {qt[0]}, {qt[0]}, {qL4[1]}")
    A(f"v_add_f32 {qG[2]}, {qt[1]}, {qL4[2]}")
    A(f"v_mov_b32 {qG[3]}, {sTAG}")
    A("s_nop 1")
    A(f"v_pk_mul_f32 {qD0[0:2]}, {qD0[0:2]}, {qt[0].p}[{qt[0].n}:{qt[0].n+1}] op_sel_hi:[1,0]" if qt[0].n % 2 == 0 else "ERR")
    A(f"v_pk_mul_f32 {qD0[2:4]}, {qD0[2:4]}, {qt[0].p}[{qt[0].n}:{qt[0].n+1}] op_sel_hi:[1,0]")
    A(f"v_pk_mul_f32 {qD1[0:2]}, {qD1[0:2]}, {qt[0].p}[{qt[0].n}:{qt[0].n+1}] op_sel_hi:[1,0]")
    A(f"v_pk_mul_f32 {qD1[2:4]}, {qD1[2:4]}, {qt[0].p}[{qt[0].n}:{qt[0].n+1}] op_sel_hi:[1,0]")
    for r in range(4):
        A(f"v_add_f32_dpp {qS[r]}, {qD0[r]}, {qD0[r]} row_ror:4 row_mask:0xf bank_mask:0x5")
    for r in range(4):
        A(f"v_add_f32_dpp {qS[r]}, {qD1[r]}, {qD1[r]} row_ror:4 row_mask:0xf bank_mask:0xa")
    for r in range(4):
        A(f"v_add_f32_dpp {qS[r]}, {qS[r]}, {qS[r]} row_ror:8 row_mask:0xf bank_mask:0xf")
    A(f"v_cvt_pk_bf16_f32 {qG[0]}, {qS[0]}, {qS[1]}")
    A(f"v_cvt_pk_bf16_f32 {qG[1]}, {qS[2]}, {qS[3]}")
    A(f"s_or_b64 exec, {sM[0]}, {sM[1]}")
    A(f"global_store_dwordx4 {qOPUB}, {qG}, {pWS} sc1")
    A("s_mov_b64 exec, -1")
    TS(6)
    C("hop 2 / hop F polls")
    def ld_h():
        A(f"global_load_dwordx4 {qH[0:4]}, {qHP}, {pWS} sc1")
        A(f"global_load_dwordx4 {qH[4:8]}, {qHP2}, {pWS} sc1")
    def ld_o():
        A(f"global_load_dwordx4 {qO[0:4]}, {qOP}, {pWS} sc1")
        A(f"global_load_dwordx4 {qO[4:8]}, {qOP}, {pWS} offset:128 sc1")
    ld_h(); ld_o()
    A(f"s_bfe_u32 {st[0]}, s2, 0x20004")
    A(f"s_lshl_b32 {st[0]}, {st[0]}, 9")
    A(f"s_lshr_b32 {st[4]}, s2, 6")
    A(f"s_lshl_b32 {st[4]}, {st[4]}, 7")
    A(f"s_add_u32 {st[0]}, {st[0]}, {st[4]}")
    A(f"s_and_b32 {st[4]}, s2, 15")
    A(f"s_lshl_b32 {st[4]}, {st[4]}, 3")
    A(f"s_add_u32 {st[0]}, {st[0]}, {st[4]}")
    A(f"v_and_b32 {qt[2]}, 1, v0")
    A(f"v_lshl_add_u32 {qt[2]}, {qt[2]}, 2, v1")
    A(f"v_add_lshl_u32 {qKO}, {qt[2]}, {st[0]}, 1")
    A(f"global_load_ushort {qX}, {qKO}, {pX}")
    A("s_waitcnt vmcnt(3)")
    LB("L_hchk")
    tagcheck([qH[k] for k in range(8)], qt[0])
    A("s_cbranch_vccz L_hok")
    ld_h()
    A(f"s_sub_u32 {sCNT}, {sCNT}, 1")
    A("s_cbranch_scc1 L_end")
    A("s_waitcnt vmcnt(0)")
    A("s_branch L_hchk")
    LB("L_hok")
    TS(7)
    def red8(src, dst):
        for r in range(4):
            A(f"v_add_f32_dpp {dst[r]}, {src[r]}, {src[r]} row_ror:8 row_mask:0xf bank_mask:0x3")
        for r in range(4):
            A(f"v_add_f32_dpp {dst[r]}, {src[4+r]}, {src[4+r]} row_ror:8 row_mask:0xf bank_mask:0xc")
        rowsT(dst)
    def rowsT(dst):
        A("s_nop 1")
        A(f"v_permlane16_swap_b32 {dst[0]}, {dst[1]}")
        A(f"v_permlane16_swap_b32 {dst[2]}, {dst[3]}")
        A(f"v_add_f32 {dst[0]}, {dst[0]}, {dst[1]}")
        A(f"v_add_f32 {dst[2]}, {dst[2]}, {dst[3]}")
        A("s_nop 1")
        A(f"v_permlane32_swap_b32 {dst[0]}, {dst[2]}")
        A(f"v_add_f32 {dst[0]}, {dst[0]}, {dst[2]}")
    def rbf(r):
        A(f"v_cvt_pk_bf16_f32 {r}, {r}, {r}")
        A(f"v_and_b32 {r}, {sHI}, {r}")
    def silu(dst, x):
        A(f"v_mul_f32 {dst}, 0xbfb8aa3b, {x}")
        A(f"v_exp_f32 {dst}, {dst}")
        A("s_nop 0")
        A(f"v_add_f32 {dst}, 1.0, {dst}")
        A(f"v_rcp_f32 {dst}, {dst}")
        A("s_nop 0")
        A(f"v_mul_f32 {dst}, {dst}, {x}")
        rbf(dst)
    red8(qH, qS)
    rbf(qS[0])
    silu(qS[1], qS[0])
    A("s_nop 1")
    A(f"v_mul_f32_dpp {qS[1]}, {qS[0]}, {qS[1]} row_ror:8 row_mask:0xf bank_mask:0xf")
    A(f"v_cvt_pk_bf16_f32 {qS[1]}, {qS[1]}, {qS[1]}")
    A(f"v_cmp_ne_u32 vcc, 7, {qt[5]}")
    A(f"s_mov_b32 {sA[0]}, 0x00ff00ff")
    A(f"s_mov_b32 {sA[1]}, 0x00ff00ff")
    A(f"v_cndmask_b32 {qS[1]}, 0, {qS[1]}, vcc")
    A(f"s_mov_b64 exec, {sA}")
    A(f"ds_write_b16 {qHW}, {qS[1]}")
    A("s_mov_b64 exec, -1")
    A("s_waitcnt lgkmcnt(0)")
    A("s_barrier")
    for x in range(2):
        A(f"ds_read_b128 {qPB[4*x:4*x+4]}, {qHA[x]}")
        for T in range(2):
            A(f"ds_read_b64_tr_b16 {qVT[x*4+T*2:x*4+T*2+2]}, {qTRb if x else qTRa} offset:{L_W2-L_VV+T*4096}")
    for ks in range(2):
        for x in range(2):
            for T in range(2):
                o = 8 + (ks*2+x)*4 + T*2
                A(f"ds_read_b64_tr_b16 {qVT[o:o+2]}, {qTRb if x else qTRa} offset:{L_WO-L_VV+ks*8192+T*4096}")
    A("s_waitcnt lgkmcnt(8)")
    A(f"v_mfma_f32_16x16x32_bf16 {qD0}, {qVT[0:4]}, {qPB[0:4]}, 0")
    A(f"v_mfma_f32_16x16x32_bf16 {qD0}, {qVT[4:8]}, {qPB[4:8]}, {qD0}")
    A("s_waitcnt vmcnt(1)")
    LB("L_ochk")
    A(f"v_cmp_ne_u32 vcc, {sTAG}, {qO[3]}")
    A(f"v_cmp_ne_u32 {sA}, {sTAG}, {qO[7]}")
    A(f"s_or_b64 vcc, vcc, {sA}")
    A("s_cbranch_vccz L_ook")
    ld_o()
    A(f"s_sub_u32 {sCNT}, {sCNT}, 1")
    A("s_cbranch_scc1 L_end")
    A("s_waitcnt vmcnt(0)")
    A("s_branch L_ochk")
    LB("L_ook")
    TS(8)
    A(f"v_max_f32_dpp {qt[0]}, {qO[2]}, {qO[2]} row_ror:8 row_mask:0xf bank_mask:0xf")
    A(f"v_lshlrev_b32 {qH[0]}, 16, {qO[0]}")
    A(f"v_mov_b32 {qt[1]}, {qt[0]}")
    A(f"v_and_b32 {qH[1]}, {sHI}, {qO[0]}")
    A(f"v_lshlrev_b32 {qH[2]}, 16, {qO[1]}")
    A(f"v_permlane16_swap_b32 {qt[0]}, {qt[1]}")
    A(f"v_max_f32 {qt[0]}, {qt[0]}, {qt[1]}")
    A(f"v_mov_b32 {qt[1]}, {qt[0]}")
    A(f"v_and_b32 {qH[3]}, {sHI}, {qO[1]}")
    A(f"v_lshlrev_b32 {qH[4]}, 16, {qO[4]}")
    A(f"v_permlane32_swap_b32 {qt[0]}, {qt[1]}")
    A(f"v_max_f32 {qt[0]}, {qt[0]}, {qt[1]}")
    A(f"v_sub_f32 {qt[0]}, {qO[2]}, {qt[0]}")
    A(f"v_exp_f32 {qt[0]}, {qt[0]}")
    A(f"v_and_b32 {qH[5]}, {sHI}, {qO[4]}")
    A(f"v_lshlrev_b32 {qH[6]}, 16, {qO[5]}")
    A(f"v_and_b32 {qH[7]}, {sHI}, {qO[5]}")
    A(f"v_add_f32_dpp {qt[2]}, {qt[0]}, {qt[0]} row_ror:8 row_mask:0xf bank_mask:0xf")
    w2 = f"{qt[0].p}[{qt[0].n}:{qt[0].n+1}]"
    A(f"v_pk_mul_f32 {qH[0:2]}, {qH[0:2]}, {w2} op_sel_hi:[1,0]")
    A(f"v_mov_b32 {qt[3]}, {qt[2]}")
    A(f"v_pk_mul_f32 {qH[2:4]}, {qH[2:4]}, {w2} op_sel_hi:[1,0]")
    A(f"v_pk_mul_f32 {qH[4:6]}, {qH[4:6]}, {w2} op_sel_hi:[1,0]")
    A(f"v_permlane16_swap_b32 {qt[2]}, {qt[3]}")
    A(f"v_add_f32 {qt[2]}, {qt[2]}, {qt[3]}")
    A(f"v_mov_b32 {qt[3]}, {qt[2]}")
    A(f"v_pk_mul_f32 {qH[6:8]}, {qH[6:8]}, {w2} op_sel_hi:[1,0]")
    A("s_nop 0")
    A(f"v_permlane32_swap_b32 {qt[2]}, {qt[3]}")
    A(f"v_add_f32 {qt[2]}, {qt[2]}, {qt[3]}")
    A(f"v_rcp_f32 {qt[2]}, {qt[2]}")
    red8(qH, qS)
    A(f"v_mul_f32 {qS[0]}, {qS[0]}, {qt[2]}")
    A(f"v_cvt_pk_bf16_f32 {qS[0]}, {qS[0]}, {qS[0]}")
    A(f"ds_write_b16 {qOW}, {qS[0]}")
    A("s_waitcnt lgkmcnt(0)")
    A("s_barrier")
    for ks in range(2):
        for x in range(2):
            A(f"ds_read_b128 {qPB[(ks*2+x)*4:(ks*2+x)*4+4]}, {qOA[x]} offset:{ks*64}")
    A("s_waitcnt lgkmcnt(0)")
    for k in range(4):
        A(f"v_mfma_f32_16x16x32_bf16 {qD0}, {qVT[8+4*k:12+4*k]}, {qPB[4*k:4*k+4]}, {qD0}")
    A(f"v_lshlrev_b32 {qt[0]}, 4, v0")
    A(f"s_lshl_b32 {st[0]}, s2, 12")
    A(f"s_add_u32 {st[0]}, {st[0]}, {W_P3}")
    A(f"v_add_u32 {qt[0]}, {st[0]}, {qt[0]}")
    A("s_nop 3")
    for k in range(4):
        A(f"v_and_or_b32 {qD0[k]}, {qD0[k]}, {qFF}, {sT[k]}")
    A(f"global_store_dwordx4 {qP3}, {qD0}, {pWS} sc1")
    TS(9)
    A(f"s_cmp_eq_u32 {sW}, 0")
    A("s_cbranch_scc0 L_qend")
    C("final reduction")
    LB("L_dpoll")
    for u in range(4):
        A(f"global_load_dwordx4 {qPB[4*u:4*u+4]}, {qt[0]}, {pWS} offset:{u*1024} sc1")
    A(f"s_sub_u32 {sCNT}, {sCNT}, 1")
    A("s_cbranch_scc1 L_end")
    A("s_waitcnt vmcnt(0)")
    tagcheck([qPB[k] for k in range(16)], qt[1])
    A("s_cbranch_vccnz L_dpoll")
    TS(10)
    A(f"v_pk_add_f32 {qPB[0:2]}, {qPB[0:2]}, {qPB[4:6]}")
    A(f"v_pk_add_f32 {qPB[2:4]}, {qPB[2:4]}, {qPB[6:8]}")
    A(f"v_pk_add_f32 {qPB[8:10]}, {qPB[8:10]}, {qPB[12:14]}")
    A(f"v_pk_add_f32 {qPB[10:12]}, {qPB[10:12]}, {qPB[14:16]}")
    A(f"v_pk_add_f32 {qPB[0:2]}, {qPB[0:2]}, {qPB[8:10]}")
    A(f"v_pk_add_f32 {qPB[2:4]}, {qPB[2:4]}, {qPB[10:12]}")
    A("s_nop 0")
    for sh in (4, 8):
        for r in range(4):
            A(f"v_add_f32_dpp {qPB[r]}, {qPB[r]}, {qPB[r]} row_ror:{sh} row_mask:0xf bank_mask:0xf")
    rowsT(qPB)
    rbf(qPB[0])
    silu(qPB[1], qPB[0])
    A("s_nop 1")
    A(f"v_mul_f32_dpp {qPB[1]}, {qPB[1]}, {qPB[0]} quad_perm:[2,3,0,1] row_mask:0xf bank_mask:0xf")
    rbf(qPB[1])
    A(f"v_lshlrev_b32 {qX}, 16, {qX}")
    A(f"v_add_f32 {qPB[1]}, {qX}, {qPB[1]}")
    A(f"v_cvt_pk_bf16_f32 {qPB[1]}, {qPB[1]}, {qPB[1]}")
    A(f"s_mov_b32 {sA[0]}, 0x00030003")
    A(f"s_mov_b32 {sA[1]}, 0x00030003")
    A(f"s_mov_b64 exec, {sA}")
    A(f"global_store_short {qKO}, {qPB[1]}, {pOUT}")
    A("s_cmp_eq_u32 s2, 0")
    A("s_cbranch_scc0 L_qend")
    A("s_mov_b64 exec, 1")
    A(f"v_mov_b32 {qt[0]}, 0")
    A(f"v_mov_b32 {qt[1]}, {sTAG}")
    A(f"global_store_dword {qt[0]}, {qt[1]}, {pWS} sc1")
    LB("L_qend")
    TS(11)
    TSDUMP(12)
    LB("L_end")
    A("s_endpgm")
    LB("L_codeend")
    L.append('.section .rodata,"a"')
    L.append(".p2align 6")
    L.append(f".amdhsa_kernel {KNAME}")
    nv = max(V.hi, VQ.hi, VL.hi)
    nv = (nv + 7)//8*8
    L.append(f"  .amdhsa_next_free_vgpr {nv}")
    L.append("  .amdhsa_next_free_sgpr 100")
    L.append(f"  .amdhsa_accum_offset {nv}")
    L.append("  .amdhsa_group_segment_fixed_size 0")
    L.append("  .amdhsa_kernarg_size 96")
    L.append("  .amdhsa_user_sgpr_count 2")
    L.append("  .amdhsa_user_sgpr_kernarg_segment_ptr 1")
    L.append("  .amdhsa_system_sgpr_workgroup_id_x 1")
    L.append("  .amdhsa_float_denorm_mode_32 3")
    L.append(".end_amdhsa_kernel")
    return L

if __name__ == "__main__":
    ref = open("recurrent_scan__sliding_block_cached__glu_gated_swiglu__decode.s.ref").read().splitlines()
    hdr = [l for l in ref if l.startswith(";") and "@launch" not in l]
    for diag, fn in ((False, "k1.s"), (True, "k1_diag.s")):
        L = gen(diag=diag, header=hdr)
        for p in check_hazards(L): print("HAZARD", fn, p)
        open(fn, "w").write("\n".join(L) + "\n")
```

```python
import sys, json
from asmlib import *

KNAME = "recurrent_scan__sliding_block_cached__glu_gated_swiglu__decode_kernel"

L_WQ, L_W1, L_VV, L_WO, L_W2, L_KK = 0, 16384, 32768, 65536, 81920, 90112
L_XN = 122880; XN_ST = 1088
L_ZR = L_XN + 4*XN_ST
L_SY = L_ZR + 1024
L_QL = L_SY + 64; QL_ST = 320
L_PL = L_QL + 4*QL_ST
L_SL = L_PL + 1024
L_ML = L_SL + 256
L_OL = L_ML + 64; OL_ST = 320
L_HL = L_OL + 4*OL_ST; HL_ST = 192
L_END = L_HL + 4*HL_ST
W_EP = 0
W_Q1 = 4096
W_H1 = W_Q1 + 262144
W_O2 = W_H1 + 458752
W_P3 = W_O2 + 524288
W_TS = W_P3 + 1048576
W_DUM = W_TS + 131072
DELTA = 4 << 20
EP_INC = 0x9E3779B1


DOC = """\
; ---------------------------------------------------------------------------------------------------------
; out = x + (attention(LN(x)) @ wo) * silu(swiglu(LN(x)) @ w2)
;
;   0    layer norm of x, later h = silu(gate) * up for this workgroup's rows of w2
;   5    loader: streams w1|w3, K, V, w2, wo tiles into LDS (LDS-DMA, bounded number in flight), then final reduction
;   6    touches the later code once (instruction cache); in workgroup 1 it finds out which half of the chip holds
;        which copy of the last hand-off buffer (a hint, speed only)
;
; + constant; the epoch is moved on at the end), so a granule is either this launch's or ignored.
;   q, gate/up and o partials stay inside a group: plain stores into lines already in L2, read by L1-bypassing loads.
;   Unless the die ids in the q granules show that the whole group shares one L2, write-through copies (4 MiB higher)
;   follow, and a reader that keeps missing also looks at those, so the result does not depend on where workgroups run.  The last hand-off (partial output rows) is written through.
; ---------------------------------------------------------------------------------------------------------"""

def gen(diag=False, header=None, opts=None):
    opts = opts or {}
    nt = opts.get("nt", "nt")
    prefetch = opts.get("prefetch", 1)
    NFAIL = opts.get("nfail", 24)
    L = []
    DU = opts.get('dup', 0)
    NEAR = opts.get('near', 1)
    D2 = 0 if NEAR else opts.get('dup2')
    ONE = NEAR and not opts.get('twost', 1)
    PRI = NEAR and not ONE and opts.get('pri', 1)
    if D2 is not None: DU = 0
    W_P3 = 0x280000 if (DU or D2 is not None) else globals()['W_P3']
    TAIL = []
    def A(s): L.append("  " + s)
    def LB(s): L.append(s + ":")
    def C(s): L.append("  ; " + s)
    S = Regs('s', 32, 100)
    sTAG = S.alloc('tag'); sT = [S.alloc(f't{k}') for k in range(4)]
    sW = S.alloc('w'); sB = S.alloc('b'); sSp = S.alloc('sp'); sCNT = S.alloc('cnt')
    sHB = S.alloc('hb'); sCB = R('s', 6, 1)
    sA = S.alloc('a', 2); sBb = S.alloc('bb', 2); sC = S.alloc('c', 2)
    sM = [S.alloc(f'm{k}', 2) for k in range(4)]
    st = [S.alloc(f'tmp{k}') for k in range(6)]
    sHI = S.alloc('hi'); sFV = S.alloc('fv'); sSY = S.alloc('sy'); sFB = S.alloc('fb'); sMODE = S.alloc('mode')
    TS0 = 68
    if opts.get('fb') and diag: TSMAX = 10
    S.limit = 68
    assert S.n <= TS0, S.n
    pX, pK, pV, pWQ, pWO, pW1, pW3, pW2, pOUT, pWS = ("s[8:9]","s[10:11]","s[12:13]","s[14:15]","s[16:17]","s[20:21]","s[22:23]","s[24:25]","s[26:27]","s[30:31]")
    ampctx = [False]
    def TS(k):
        if ampctx[0] and opts.get("amp") == k and k is not None: A("s_memrealtime s[94:95]")
        if diag and k is not None: A(f"s_memrealtime s[{TS0+2*k}:{TS0+2*k+1}]")
    def CN(k):
        if diag: A(f"s_mov_b32 s{TS0+2*k}, {sCNT}")
    def TSDUMP(n):
        if diag:
            A("s_waitcnt lgkmcnt(0)")
            A(f"s_lshl_b32 {st[0]}, s2, 3")
            A(f"s_add_u32 {st[0]}, {st[0]}, s3")
            A(f"s_lshl_b32 {st[0]}, {st[0]}, 6")
            A(f"s_add_u32 {st[0]}, {st[0]}, {W_TS}")
            A("s_mov_b64 exec, 1")
            A(f"v_mov_b32 v2, {st[0]}")
            for k in range(n):
                A(f"v_mov_b32 v3, s{TS0+2*k}")
                A(f"global_store_dword v2, v3, {pWS} offset:{4*k}")
    def add64(dst, src, off):
        lo = int(src[2:src.index(':')])
        A(f"s_add_u32 {dst[0]}, s{lo}, {off}")
        A(f"s_addc_u32 {dst[1]}, s{lo+1}, 0")
    def tagbytes():
        A(f"s_add_u32 {sTAG}, {sTAG}, {EP_INC:#x}")
        A(f"s_and_b32 {sT[0]}, {sTAG}, 0xff")
        A(f"s_bfe_u32 {sT[1]}, {sTAG}, 0x80008")
        A(f"s_bfe_u32 {sT[2]}, {sTAG}, 0x80010")
        A(f"s_lshr_b32 {sT[3]}, {sTAG}, 24")
    def pair(r):
        assert r.n % 2 == 0
        return f"{r.p}[{r.n}:{r.n+1}]"
    sTQ = R('s', 28, 1); sXC = R('s', 29, 1)
    sKF = R('s', 7, 1); sKR = R('s', 18, 1)
    HM = opts.get("hm", 0x30)
    def hblock(t0_, t1_):
        A(f"s_bfm_b32 {t0_}, s4, 0")
        A(f"s_and_b32 {t0_}, {t0_}, {HM}")
        A(f"s_bcnt1_i32_b32 {t0_}, {t0_}")
        A(f"s_lshl_b32 {sHB}, s4, 1")
        A(f"s_sub_u32 {sHB}, {sHB}, {t0_}")
        A(f"s_lshr_b32 {t0_}, {sB}, 1")
        A(f"s_lshr_b32 {sKF}, {sSp}, 1")
        A(f"s_bfe_u32 {t1_}, s5, 0x30001")
        A(f"s_lshr_b32 {sFV}, {HM}, s4")
        A(f"s_andn2_b32 {sFV}, 1, {sFV}")
        A(f"s_cselect_b32 {t0_}, {sB}, {t0_}")
        A(f"s_cselect_b32 {sKF}, {sKF}, {t1_}")
        A(f"s_lshl1_add_u32 {sHB}, {sHB}, {t0_}")
    def tagcheck(regs, acc, dst="vcc", t0=None):
        for k, r in enumerate(regs):
            A(f"v_xor_b32 {r}, {t0 if (t0 and k % 4 == 0) else sT[k%4]}, {r}")
        A(f"v_or3_b32 {acc}, {regs[0]}, {regs[1]}, {regs[2]}")
        rest = regs[3:]
        while rest:
            if len(rest) >= 2:
                A(f"v_or3_b32 {acc}, {acc}, {rest[0]}, {rest[1]}"); rest = rest[2:]
            else:
                A(f"v_or_b32 {acc}, {acc}, {rest[0]}"); rest = rest[1:]
        A(f"v_and_b32 {acc}, 0xff, {acc}")
        A(f"v_cmp_ne_u32 {dst}, 0, {acc}")
    def rowsT(dst):
        A("s_nop 1")
        A(f"v_permlane16_swap_b32 {dst[0]}, {dst[1]}")
        A(f"v_permlane16_swap_b32 {dst[2]}, {dst[3]}")
        A(f"v_add_f32 {dst[0]}, {dst[0]}, {dst[1]}")
        A(f"v_add_f32 {dst[2]}, {dst[2]}, {dst[3]}")
        A("s_nop 1")
        A(f"v_permlane32_swap_b32 {dst[0]}, {dst[2]}")
        A(f"v_add_f32 {dst[0]}, {dst[0]}, {dst[2]}")
    def rowsT2(a, b):
        A(f"v_permlane16_swap_b32 {a[0]}, {a[1]}")
        A(f"v_permlane16_swap_b32 {a[2]}, {a[3]}")
        A(f"v_permlane16_swap_b32 {b[0]}, {b[1]}")
        A(f"v_permlane16_swap_b32 {b[2]}, {b[3]}")
        A(f"v_add_f32 {a[0]}, {a[0]}, {a[1]}")
        A(f"v_add_f32 {a[2]}, {a[2]}, {a[3]}")
        A(f"v_add_f32 {b[0]}, {b[0]}, {b[1]}")
        A(f"v_add_f32 {b[2]}, {b[2]}, {b[3]}")
        A(f"v_permlane32_swap_b32 {a[0]}, {a[2]}")
        A("s_nop 0")
        A(f"v_permlane32_swap_b32 {b[0]}, {b[2]}")
        A(f"v_add_f32 {a[0]}, {a[0]}, {a[2]}")
        A(f"v_add_f32 {b[0]}, {b[0]}, {b[2]}")
    def rbf(r):
        A(f"v_cvt_pk_bf16_f32 {r}, {r}, {r}")
        A(f"v_and_b32 {r}, {sHI}, {r}")
    def silu(dst, x):
        A(f"v_mul_f32 {dst}, 0xbfb8aa3b, {x}")
        A(f"v_exp_f32 {dst}, {dst}")
        A("s_nop 0")
        A(f"v_add_f32 {dst}, 1.0, {dst}")
        A(f"v_rcp_f32 {dst}, {dst}")
        A("s_nop 0")
        A(f"v_mul_f32 {dst}, {dst}, {x}")
        rbf(dst)
    def swz128(d3, d4):
        A(f"v_and_b32 {d3}, 1, v1")
        A(f"v_lshlrev_b32 {d3}, 1, {d3}")
        A(f"v_and_b32 {d4}, 7, v0")
        A(f"v_xor_b32 {d3}, {d3}, {d4}")
        A(f"v_lshlrev_b32 {d3}, 4, {d3}")
        A(f"v_lshrrev_b32 {d4}, 3, v0")
    def four(a, rb):
        A(f"v_xor_b32 {a[1]}, 64, {a[0]}")
        A(f"v_add_u32 {a[1]}, {8*rb-1024}, {a[1]}")
        A(f"v_add_u32 {a[2]}, {16*rb-2048}, {a[0]}")
        A(f"v_add_u32 {a[3]}, {16*rb-2048}, {a[1]}")

    L += header or []
    L.append(f"; @launch grid=(256,1,1) block=({opts.get('nthr', 448 if NEAR else 384)},1,1) lds={opts.get('ldsb', L_END)}")
    L += DOC.splitlines()
    L.append('.amdgcn_target "amdgcn-amd-amdhsa--gfx950"')
    L.append(".text")
    L.append(f".globl {KNAME}")
    L.append(".p2align 12")
    L.append(".fill 832, 4, 0xbf800000")
    L.append(".p2align 8")
    L.append(f".type {KNAME},@function")
    L.append(f"{KNAME}:")
    TS(0)
    if opts.get("hold"): A("s_memrealtime s[98:99]")
    A("s_load_dwordx16 s[8:23], s[0:1], 0")
    A("s_load_dwordx8 s[24:31], s[0:1], 64")
    A("s_cmp_ge_u32 s2, 256")
    A("s_cbranch_scc1 L_end")
    A("v_lshrrev_b32 v1, 6, v0")
    A("v_and_b32 v0, 63, v0")
    A("v_readfirstlane_b32 s3, v1")
    A("s_and_b32 s4, s2, 7")
    A("s_lshr_b32 s5, s2, 3")
    A("v_lshrrev_b32 v1, 4, v0")
    A("v_and_b32 v2, 15, v0")
    A(f"s_lshr_b32 {sB}, s5, 3")
    if opts.get("spx"):
        A(f"s_add_u32 {sSp}, s5, {opts['spx']}")
        A(f"s_and_b32 {sSp}, {sSp}, 7")
    else:
        A(f"s_and_b32 {sSp}, s5, 7")
    A(f"s_xor_b32 {sCB}, {sSp}, {opts.get('cbx', 4)}")
    A("s_cmp_eq_u32 s3, 0")
    A("s_cbranch_scc1 L_LN")
    if opts.get("nthr"):
        A(f"s_cmp_gt_u32 s3, {6 if NEAR else 5}")
        A("s_cbranch_scc1 L_end")
    if NEAR:
        A("s_cmp_eq_u32 s3, 6")
        A("s_cbranch_scc1 L_PR")
    swz128("v3", "v4")
    A("s_cmp_eq_u32 s3, 5")
    A("s_cbranch_scc1 L_LD")

    VQ = Regs('v', 6, 256)
    def qa(n, c=1, al=None): return VQ.alloc(n, c, al)
    qt = [qa(f't{k}') for k in range(6)]
    qSY = qa('sy'); qON = qa('on'); qQP = qa('qp'); qFF = qa('ff')
    qTRa = qa('tra'); qTRb = qa('trb'); qTRw = qa('trw'); qXF = qa('xf')
    qKA = [qa(f'ka{k}') for k in range(4)]
    qPBA = [qa(f'pba{k}') for k in range(2)]
    qOA = qa('oa'); qHA = qa('ha')
    qQW = qa('qw'); qQR = qa('qr'); qPW = qa('pw'); qSW = qa('sw'); qSR = qa('sr')
    qQPUB = qa('qpub'); qFPUB = qa('fpub'); qOPUB = qa('opub')
    qOP = qa('op'); qP3 = qa('p3')
    qKF = qa('kf', 32, 4)
    qQ = qa('q', 8, 4); qQ2 = qa('q2', 8, 4); qQB = qa('qb', 16, 4); qS = qa('s', 8, 4); qP = qa('p', 4, 4)
    qVT = qa('vt', 32, 4); qPB = qa('pb', 32, 4); qD0 = qa('d0', 4, 4); qD1 = qa('d1', 4, 4); qM4 = qa('m4', 4, 4)
    qL4 = qa('l4', 4, 4); qG = qa('g', 4, 4); qBQ = qa('bq', 4, 4); qBH = qa('bh', 4, 4)
    qO = qKF[0:16]; qU = qKF[16:32]; qO2 = qa('o2', 16, 4)
    A(f"s_setprio {opts.get('qprio', 2)}")
    A(f"s_sub_u32 {sW}, s3, 1")
    C("wq tile: rows 128*kq + 32*w .., cols 512*g + 64*cb")
    A(f"s_lshl_b32 {st[0]}, {sB}, 2")
    A(f"s_add_u32 {st[0]}, {st[0]}, {sW}")
    A(f"s_lshl_b32 {st[0]}, {st[0]}, 8")
    A(f"s_add_u32 {st[0]}, {st[0]}, s4")
    A(f"s_lshl_b32 {st[0]}, {st[0]}, 3")
    A(f"s_add_u32 {st[0]}, {st[0]}, {sCB}")
    A(f"s_lshl_b32 {st[0]}, {st[0]}, 7")
    A(f"s_lshl_b32 m0, {sW}, 12")
    A(f"v_lshl_add_u32 {qt[0]}, v4, 13, v3")
    four(qt, 8192)
    A("s_waitcnt lgkmcnt(0)")
    add64(sA, pWQ, st[0])
    for u in range(4):
        A(f"global_load_lds_dwordx4 {qt[u]}, {sA} offset:{u*1024} {nt}")
    A("s_barrier")
    hblock(st[0], st[1])
    if opts.get("so"):
        A("s_waitcnt vmcnt(0)")
        A("s_endpgm")
    A(f"s_load_dword {sTAG}, {pWS}, {W_EP}")
    TS(1)
    A("s_branch L_Q2")

    VD = Regs('v', 6, 256)
    dt = [VD.alloc(f't{k}') for k in range(2)]
    dA = [VD.alloc(f'a{k}') for k in range(4)]
    dXO = VD.alloc('xo'); dXR = VD.alloc('xr'); dDP = VD.alloc('dp'); dSY = VD.alloc('sy'); dON = VD.alloc('on'); dXT = VD.alloc('xt')
    dP = VD.alloc('p', 8, 4)
    LB("L_LD")
    ampctx[0] = True
    if opts.get("fb"):
        A("s_memrealtime s[88:89]")
    sK, sV, sF, sW2, sWO = sA, sBb, sC, sM[0], sM[1]
    dF = [VD.alloc(f'f{k}') for k in range(4)]; dV = [VD.alloc(f'v{k}') for k in range(2)]; dW = [VD.alloc(f'w{k}') for k in range(4)]
    hblock(st[0], st[1])
    A(f"s_lshl_b32 {st[0]}, {sKF}, {sFV}")
    A(f"s_mul_i32 {st[0]}, {st[0]}, {64*3584}")
    A(f"s_lshl_b32 {st[3]}, {sHB}, 7")
    A(f"s_add_u32 {st[0]}, {st[0]}, {st[3]}")
    A(f"v_mul_u32_u24 {dF[0]}, 3584, v4")
    A(f"v_add_u32 {dF[0]}, {dF[0]}, v3")
    four(dF, 3584)
    A(f"s_mov_b32 m0, {L_W1}")
    A(f"s_bitcmp0_b32 {sSp}, 0")
    A("s_waitcnt lgkmcnt(0)")
    A(f"s_cselect_b64 {sF}, {pW1}, {pW3}")
    A(f"s_add_u32 {sF[0]}, {sF[0]}, {st[0]}")
    A(f"s_addc_u32 {sF[1]}, {sF[1]}, 0")
    if opts.get("fb"):
        A("s_mov_b32 s92, s88")
        A("s_cmp_eq_u32 s5, 0")
        A("s_cbranch_scc0 L_noat")
        A("s_not_b32 s90, s88")
        A(f"v_mov_b32 {dt[0]}, 0")
        A(f"v_mov_b32 {dt[1]}, s90")
        A("s_mov_b64 exec, 1")
        A(f"global_atomic_umax {dt[0]}, {dt[1]}, s[28:29] sc1")
        A("s_mov_b64 exec, -1")
        LB("L_noat")
    if not opts.get("lateb"): A("s_barrier")
    TS(1)
    A("s_branch L_LD2")

    VL = Regs('v', 3, 256)
    lt = [VL.alloc(f't{k}') for k in range(5)]
    lA = VL.alloc('acc', 4, 2); lM = VL.alloc('m', 2, 2); lR = VL.alloc('r', 2, 2)
    lZ = VL.alloc('z', 4, 4); lX = VL.alloc('x', 16, 4); lF = VL.alloc('f', 32, 4); lD = VL.alloc('dd', 32, 4)
    ampctx[0] = False
    LB("L_LN")
    A("s_setprio 3")
    A(f"v_lshlrev_b32 {lt[0]}, 4, v0")
    if prefetch:
        A(f"s_getpc_b64 {sA}")
        LB("L_pc")
        A(f"s_lshl_b32 {st[0]}, s5, 10")
        A(f"s_cmp_ge_u32 {st[0]}, L_codeend-L_pc")
        A("s_cbranch_scc1 L_nopf")
        A(f"v_add_u32 {lt[1]}, {st[0]}, {lt[0]}")
        A(f"global_load_dwordx4 {lZ}, {lt[1]}, {sA}")
        LB("L_nopf")
    A(f"v_lshlrev_b32 {lt[1]}, 10, v1")
    A(f"v_lshl_add_u32 {lt[1]}, v2, 4, {lt[1]}")
    for k in range(4): A(f"v_mov_b32 {lD[k]}, 0")
    A(f"v_add_u32 {lt[0]}, {L_ZR}, {lt[0]}")
    A(f"ds_write_b128 {lt[0]}, {lD[0:4]}")
    A(f"ds_write_b128 {lt[0]}, {lD[0:4]} offset:64")
    A("s_waitcnt lgkmcnt(0)")
    for u in range(4):
        A(f"global_load_dwordx4 {lX[4*u:4*u+4]}, {lt[1]}, {pX} offset:{u*256}")
    TS(1)
    if opts.get("earlyb"): A("s_barrier")
    C("lines this workgroup writes first (q partials lanes 0-7, gate/up partials lanes 8-15): bring them into this die's L2")
    hblock(st[0], st[1])
    A(f"s_lshl_b32 {st[0]}, s4, 4")
    A(f"s_add_u32 {st[0]}, {st[0]}, {sB}")
    A(f"s_lshl_b32 {st[0]}, {st[0]}, 3")
    A(f"s_add_u32 {st[0]}, {st[0]}, {sCB}")
    A(f"s_lshl_b32 {st[0]}, {st[0]}, 8")
    A(f"s_add_u32 {st[0]}, {st[0]}, {W_Q1}")
    A(f"v_bfe_u32 {lt[2]}, v0, 1, 2")
    A(f"v_and_b32 {lt[3]}, 1, v0")
    A(f"v_lshlrev_b32 {lt[3]}, 7, {lt[3]}")
    A(f"v_lshl_add_u32 {lt[4]}, {lt[2]}, 13, {lt[3]}")
    A(f"v_add_u32 {lt[4]}, {st[0]}, {lt[4]}")
    A(f"s_and_b32 {st[0]}, {sSp}, 1")
    A(f"s_lshl_b32 {st[0]}, {st[0]}, 5")
    A(f"s_add_u32 {st[0]}, {st[0]}, {sKF}")
    A(f"s_mul_i32 {st[0]}, {st[0]}, 7168")
    A(f"s_lshl_b32 {st[1]}, {sHB}, 8")
    A(f"s_add_u32 {st[0]}, {st[0]}, {st[1]}")
    A(f"s_add_u32 {st[0]}, {st[0]}, {W_H1}")
    A(f"v_mul_u32_u24 {lt[2]}, {8*7168}, {lt[2]}")
    A(f"v_add3_u32 {lt[2]}, {lt[2]}, {lt[3]}, {st[0]}")
    A(f"v_cmp_gt_u32 vcc, 8, v0")
    A("s_mov_b64 exec, 0xffff")
    A("s_nop 0")
    A(f"v_cndmask_b32 {lt[4]}, {lt[2]}, {lt[4]}, vcc")
    A(f"global_load_dword {lZ[0]}, {lt[4]}, {pWS}")
    A("s_mov_b64 exec, -1")
    if not opts.get("earlyb"): A("s_barrier")
    if opts.get("so"):
        TSDUMP(4)
        A("s_endpgm")
    LB("L_LN2")
    A(f"s_load_dword {sTAG}, {pWS}, {W_EP}")
    A(f"s_mov_b32 {sHI}, 0xffff0000")
    A(f"v_mul_u32_u24 {lt[2]}, {XN_ST}, v1")
    A(f"v_lshl_add_u32 {lt[2]}, v2, 4, {lt[2]}")
    A(f"v_add_u32 {lt[2]}, {L_XN}, {lt[2]}")
    C("later lines: o partials (lanes 0-15, written) and final partials (lanes 16-31, polled)")
    A(f"s_lshl_b32 {st[0]}, s4, 2")
    A(f"s_add_u32 {st[0]}, {st[0]}, {sB}")
    A(f"s_lshl_b32 {st[0]}, {st[0]}, 5")
    A(f"s_add_u32 {st[0]}, {st[0]}, {sSp}")
    A(f"s_lshl_b32 {st[0]}, {st[0]}, 9")
    A(f"s_add_u32 {st[0]}, {st[0]}, {W_O2}")
    A(f"v_lshrrev_b32 {lt[3]}, 2, v2")
    A(f"v_lshlrev_b32 {lt[3]}, 12, {lt[3]}")
    A(f"v_and_b32 {lt[1]}, 3, v0")
    A(f"v_lshl_add_u32 {lt[3]}, {lt[1]}, 7, {lt[3]}")
    A(f"v_add_u32 {lt[3]}, {st[0]}, {lt[3]}")
    A(f"s_lshr_b32 {st[0]}, s5, 1")
    A(f"s_lshl_b32 {st[0]}, {st[0]}, 3")
    A(f"s_add_u32 {st[0]}, {st[0]}, s4")
    if opts.get("idxx"): A(f"s_xor_b32 {st[0]}, {st[0]}, {opts['idxx']}")
    if D2 is not None:
        A(f"s_and_b32 {st[1]}, {st[0]}, 1")
        A(f"s_lshr_b32 {st[0]}, {st[0]}, 1")
        A(f"s_lshl2_add_u32 {st[0]}, {st[0]}, {st[1]}")
        A(f"s_lshr_b32 {st[1]}, s4, 2")
        A(f"s_xor_b32 {st[1]}, {st[1]}, {D2}")
        if opts.get("one") or NEAR: A(f"s_mov_b32 {st[1]}, 0")
        A(f"s_lshl1_add_u32 {st[0]}, {st[1]}, {st[0]}")
    A(f"s_lshl_b32 {st[0]}, {st[0]}, 1")
    A(f"s_and_b32 {st[1]}, s5, 1")
    A(f"s_add_u32 {st[0]}, {st[0]}, {st[1]}")
    A(f"s_lshl_b32 {st[0]}, {st[0]}, {11+DU}")
    A(f"s_add_u32 {st[0]}, {st[0]}, {W_P3 - 2048*DU}")
    A(f"v_lshl_add_u32 {lt[1]}, {'v0' if DU else 'v2'}, 7, {st[0]}")
    A(f"v_cmp_gt_u32 vcc, 16, v0")
    A(f"v_mov_b32 {lt[0]}, {L_SY}")
    A(f"v_mov_b32 {lt[4]}, 1")
    A(f"v_cndmask_b32 {lt[3]}, {lt[1]}, {lt[3]}, vcc")
    A("s_waitcnt vmcnt(1) lgkmcnt(0)")
    TS(2)
    for k in range(16):
        A(f"v_lshlrev_b32 {lF[2*k]}, 16, {lX[k]}")
        A(f"v_and_b32 {lF[2*k+1]}, {sHI}, {lX[k]}")
    A(f"v_pk_add_f32 {lA[0:2]}, {lF[0:2]}, {lF[2:4]}")
    A(f"v_pk_add_f32 {lA[2:4]}, {lF[4:6]}, {lF[6:8]}")
    for k in range(4, 16):
        a = lA[0:2] if k % 2 == 0 else lA[2:4]
        A(f"v_pk_add_f32 {a}, {a}, {lF[2*k:2*k+2]}")
    A(f"v_pk_add_f32 {lA[0:2]}, {lA[0:2]}, {lA[2:4]}")
    A(f"v_add_f32 {lM[0]}, {lA[0]}, {lA[1]}")
    def rowsum(r):
        for sh in (1, 2, 4, 8):
            A("s_nop 1")
            A(f"v_add_f32_dpp {r}, {r}, {r} row_ror:{sh} row_mask:0xf bank_mask:0xf")
    rowsum(lM[0])
    A(f"v_mul_f32 {lM[0]}, 0x3b000000, {lM[0]}")
    for k in range(16):
        A(f"v_pk_add_f32 {lD[2*k:2*k+2]}, {lF[2*k:2*k+2]}, {lM} op_sel_hi:[1,0] neg_lo:[0,1] neg_hi:[0,1]")
    A(f"v_pk_mul_f32 {lA[0:2]}, {lD[0:2]}, {lD[0:2]}")
    A(f"v_pk_mul_f32 {lA[2:4]}, {lD[2:4]}, {lD[2:4]}")
    for k in range(2, 16):
        a = lA[0:2] if k % 2 == 0 else lA[2:4]
        A(f"v_pk_fma_f32 {a}, {lD[2*k:2*k+2]}, {lD[2*k:2*k+2]}, {a}")
    A(f"v_pk_add_f32 {lA[0:2]}, {lA[0:2]}, {lA[2:4]}")
    A(f"v_add_f32 {lR[0]}, {lA[0]}, {lA[1]}")
    rowsum(lR[0])
    A(f"v_mul_f32 {lR[0]}, 0x3b000000, {lR[0]}")
    C("bf16 roundings of mean, var, var+eps, sqrt as the reference does")
    A(f"v_cvt_pk_bf16_f32 {lM[0]}, {lM[0]}, {lR[0]}")
    A(f"v_and_b32 {lR[0]}, {sHI}, {lM[0]}")
    A(f"v_lshlrev_b32 {lM[0]}, 16, {lM[0]}")
    A(f"v_add_f32 {lR[0]}, 0x3727c5ac, {lR[0]}")
    A(f"v_cvt_pk_bf16_f32 {lR[0]}, {lR[0]}, {lR[0]}")
    A(f"v_and_b32 {lR[0]}, {sHI}, {lR[0]}")
    A(f"v_sqrt_f32 {lR[0]}, {lR[0]}")
    A("s_nop 0")
    A(f"v_cvt_pk_bf16_f32 {lR[0]}, {lR[0]}, {lR[0]}")
    A(f"v_and_b32 {lR[0]}, {sHI}, {lR[0]}")
    A(f"v_rcp_f32 {lR[0]}, {lR[0]}")
    A("s_nop 0")
    A(f"v_mul_f32 {lM[0]}, {lM[0]}, {lR[0]}")
    for k in range(16):
        A(f"v_pk_fma_f32 {lD[2*k:2*k+2]}, {lF[2*k:2*k+2]}, {lR}, {lM} op_sel_hi:[1,0,0] neg_lo:[0,0,1] neg_hi:[0,0,1]")
        A(f"v_cvt_pk_bf16_f32 {lX[k]}, {lD[2*k]}, {lD[2*k+1]}")
        if k % 4 == 3:
            A(f"ds_write_b128 {lt[2]}, {lX[k-3:k+1]} offset:{(k//4)*256}")
    A("s_mov_b64 exec, 1")
    A(f"ds_add_u32 {lt[0]}, {lt[4]}")
    A(f"s_mov_b32 exec_lo, {'-1' if opts.get('pw3', 1) else '0xffff'}")
    TS(3)
    if not opts.get("latepw", 1):
        A(f"global_load_dword {lZ[1]}, {lt[3]}, {pWS}")
    A("s_mov_b64 exec, -1")
    A(f"s_setprio {opts.get('hprio', 1)}")
    C("h = silu(gate) * up for this workgroup's 64 rows of w2: H1 + ((m*4+b)*4+p)*7168 + hb*256 + j*16, p = g4")
    hP = lA[0]; hW = lA[1]; hT = lA[2]; hS = [lM[0], lM[1], lR[0], lR[1]]
    hG = lF; hU = lD
    C("full tile: lane = (slot l>>4, quad l&15); half tile: lane = (slot l>>3, quad l&7) of the half (i>>3)&1")
    A(f"s_lshl_b32 {st[0]}, {sHB}, 8")
    A(f"s_and_b32 {st[1]}, {sB}, 1")
    A(f"s_lshl_b32 {st[1]}, {st[1]}, 7")
    A(f"s_cmp_eq_u32 {sFV}, 0")
    A(f"s_cselect_b32 {st[1]}, {st[1]}, 0")
    A(f"s_cselect_b32 {st[2]}, 7, 15")
    A(f"s_add_u32 {st[0]}, {st[0]}, {st[1]}")
    A(f"s_add_u32 {st[0]}, {st[0]}, {W_H1}")
    A(f"s_add_u32 {st[1]}, {sFV}, 3")
    A(f"v_lshrrev_b32 {hP}, {st[1]}, v0")
    A(f"v_mul_u32_u24 {hP}, 7168, {hP}")
    A(f"v_and_b32 {hW}, {st[2]}, v0")
    A(f"v_lshl_add_u32 {hP}, {hW}, 4, {hP}")
    A(f"v_add_u32 {hP}, {st[0]}, {hP}")
    A(f"v_lshl_add_u32 {hW}, v2, 2, v1")
    A(f"v_lshlrev_b32 {hW}, 1, {hW}")
    A(f"v_add_u32 {hW}, {L_HL}, {hW}")
    A(f"s_mov_b32 {sCNT}, 0x40000")
    A(f"s_mov_b32 {sFB}, {NFAIL}")
    A("s_waitcnt lgkmcnt(0)")
    tagbytes()
    if NEAR:
        C("memory pages alternate between the two halves of the chip every 8 KiB; the final partials are written twice, 8 KiB apart,")
        C("and each reader takes the copy in its own half. Workgroup 1 finds out which half holds copy 0 (speed only).")
        A(f"s_getreg_b32 {sW}, hwreg(HW_REG_XCC_ID)")
        A(f"s_bfe_u32 {sW}, {sW}, 0x10002")
    LB("L_hw")
    A(f"ds_read_b32 {hT}, {lt[0]} offset:{opts.get('hgate', 8) }")
    A(f"s_sub_u32 {sCNT}, {sCNT}, 1")
    A("s_cbranch_scc1 L_end")
    A("s_sleep 1")
    A("s_waitcnt lgkmcnt(0)")
    A(f"v_readfirstlane_b32 {st[0]}, {hT}")
    A(f"s_cmp_lt_u32 {st[0]}, 1")
    A("s_cbranch_scc1 L_hw")
    A(f"s_mov_b32 {sCNT}, 0x40000")
    TS(4)
    if opts.get("latepw", 1):
        A("s_mov_b64 exec, 0xffff" if NEAR else f"s_mov_b32 exec_hi, {'0xffff' if DU else 0}")
        A(f"global_load_dword {lZ[1]}, {lt[3]}, {pWS}")
        A("s_mov_b64 exec, -1")
    LB("L_hpoll")
    for b_ in range(4):
        A(f"v_add_u32 {hT}, {b_*8*7168}, {hP}")
        A(f"global_load_dwordx4 {hG[4*b_:4*b_+4]}, {hT}, {pWS} sc1")
        A(f"v_add_u32 {hT}, {(32+b_*8)*7168}, {hP}")
        A(f"global_load_dwordx4 {hG[16+4*b_:16+4*b_+4]}, {hT}, {pWS} sc1")
    if NEAR:
        A(f"s_cmp_eq_u32 {sCNT}, 0x40000")
        A("s_cbranch_scc0 L_nohint")
        C("while the gate/up partials are on their way: read the hint (late enough for it to be there) and warm this reader's lines")
        A(f"s_sleep {opts.get('hsleep', 18)}")
        A(f"s_load_dword {sMODE}, {pWS}, 128")
        A("s_waitcnt lgkmcnt(0)")
        A(f"s_xor_b32 {st[0]}, {sMODE}, {sTAG}")
        A(f"s_xor_b32 {st[1]}, {sMODE}, {sW}")
        A(f"s_and_b32 {st[1]}, {st[1]}, 1")
        A(f"s_lshl_b32 {st[1]}, {st[1]}, 13")
        A(f"s_cmp_lt_u32 {st[0]}, 2")
        A(f"s_cselect_b32 {st[1]}, {st[1]}, 0")
        A(f"v_mov_b32 {lZ[3]}, {st[1]}")
        A(f"v_add_u32 {lt[3]}, {st[1]}, {lt[3]}")
        if diag: A(f"s_mov_b32 s{TS0+2*8}, {st[1]}"); A(f"s_mov_b32 s{TS0+2*9}, {st[0]}")
        A(f"ds_write_b32 {lt[0]}, {lZ[3]} offset:32")
        if opts.get("pw3", 1):
            A("s_mov_b32 exec_lo, 0xffff0000")
            A("s_mov_b32 exec_hi, 0")
            A(f"global_load_dword {lZ[2]}, {lt[3]}, {pWS}")
        A("s_mov_b64 exec, -1")
        A(f"s_sub_u32 {sCNT}, {sCNT}, 1")
        A(f"s_waitcnt vmcnt({1 if opts.get('pw3', 1) else 0})")
        A("s_branch L_hchk")
        LB("L_nohint")
    A(f"s_sub_u32 {sCNT}, {sCNT}, 1")
    A("s_cbranch_scc1 L_end")
    A(f"s_sub_u32 {sFB}, {sFB}, 1")
    A(f"s_cmp_le_i32 {sFB}, 0")
    A(f"s_cselect_b32 {st[0]}, {DELTA}, 0")
    A(f"v_xor_b32 {hP}, {st[0]}, {hP}")
    A("s_waitcnt vmcnt(0)")
    LB("L_hchk")
    tagcheck([hG[k] for k in range(32)], hT)
    A("s_cbranch_vccnz L_hpoll")
    TS(5)
    A(f"s_mov_b64 vcc, -1")
    A(f"s_cmp_eq_u32 {sFV}, 0")
    A("s_cbranch_scc0 L_hfull")
    for k in range(32):
        A(f"v_add_f32_dpp {hG[k]}, {hG[k]}, {hG[k]} row_ror:8 row_mask:0xf bank_mask:0xf")
    A("s_mov_b32 vcc_lo, 0x00ff00ff")
    A("s_mov_b32 vcc_hi, 0x00ff00ff")
    LB("L_hfull")
    for b_ in range(4):
        rowsT2(hG[4*b_:4*b_+4], hG[16+4*b_:16+4*b_+4])
        rbf(hG[4*b_])
        rbf(hG[16+4*b_])
        silu(hS[b_], hG[4*b_])
        A(f"v_mul_f32 {hS[b_]}, {hS[b_]}, {hG[16+4*b_]}")
        A(f"v_cvt_pk_bf16_f32 {hS[b_]}, {hS[b_]}, {hS[b_]}")
        A(f"v_cndmask_b32 {hS[b_]}, 0, {hS[b_]}, vcc")
    for b_ in range(4):
        A(f"ds_write_b16 {hW}, {hS[b_]} offset:{b_*HL_ST}")
    if NEAR and opts.get("hint2", 0):
        C("second look at the hint when it was not there yet")
        A(f"s_xor_b32 {st[0]}, {sMODE}, {sTAG}")
        A(f"s_cmp_lt_u32 {st[0]}, 2")
        A("s_cbranch_scc1 L_hint2")
        A("s_mov_b64 exec, 1")
        A(f"ds_add_u32 {lt[0]}, {lt[4]} offset:24")
        A(f"s_load_dword {sMODE}, {pWS}, 128 glc")
        A("s_waitcnt lgkmcnt(0)")
        A(f"s_xor_b32 {st[0]}, {sMODE}, {sTAG}")
        A(f"s_xor_b32 {st[1]}, {sMODE}, {sW}")
        A(f"s_and_b32 {st[1]}, {st[1]}, 1")
        A(f"s_lshl_b32 {st[1]}, {st[1]}, 13")
        A(f"s_cmp_lt_u32 {st[0]}, 2")
        A(f"s_cselect_b32 {st[1]}, {st[1]}, 0")
        A(f"v_mov_b32 {lZ[3]}, {st[1]}")
        if diag: A(f"s_mov_b32 s{TS0+2*8}, {st[1]}"); A(f"s_mov_b32 s{TS0+2*9}, {st[0]}")
        A(f"ds_write_b32 {lt[0]}, {lZ[3]} offset:32")
        A("s_branch L_hend")
        LB("L_hint2")
    A("s_mov_b64 exec, 1")
    A(f"ds_add_u32 {lt[0]}, {lt[4]} offset:24")
    LB("L_hend")
    TS(6); CN(15)
    TSDUMP(16)
    A("s_endpgm")

    LB("L_LD2")
    ampctx[0] = True
    sROT = st[5]
    KG = opts.get("kg", 4)
    CAP = opts.get("cap", 24); FIRST = opts.get("first", 16)
    seq = []
    order = opts.get("order", "F16 K32 V32 W8 O16")
    cnts = {"F": 16, "K": 32, "V": 32, "W": 8, "O": 16}
    pos = dict.fromkeys(cnts, 0)
    for seg in order.split():
        kd, n_ = seg[0], int(seg[1:])
        seq += [(kd, pos[kd] + u) for u in range(n_)]
        pos[kd] += n_
    assert pos == cnts
    last = {kd: max(n for n, (k2, u) in enumerate(seq) if k2 == kd) for kd in cnts}
    for q_ in range(3): last[f"V{q_}"] = seq.index(("V", 8*q_ + 7))
    SIGS = sorted((("F", 4, 3), ("K", 8, 4), ("V0", 20, None), ("V1", 20, None), ("V2", 20, None), ("V", 20, 6)), key=lambda x: last[x[0]])
    def setup_rest():
        A(f"s_lshl_b32 {st[1]}, {sB}, 3")
        A(f"s_add_u32 {st[1]}, {st[1]}, s4")
        if opts.get("diag8", 1):
            A(f"s_lshl_b32 {st[1]}, {st[1]}, 20")
        elif opts.get("il", 1):
            A(f"s_lshl_b32 {st[1]}, {st[1]}, 8")
            A(f"s_add_u32 {st[1]}, {st[1]}, {sSp}")
            A(f"s_lshl_b32 {st[1]}, {st[1]}, 12")
        else:
            A(f"s_lshl_b32 {st[1]}, {st[1]}, 5")
            A(f"s_add_u32 {st[1]}, {st[1]}, {sSp}")
            A(f"s_lshl_b32 {st[1]}, {st[1]}, 15")
        A(f"s_add_u32 {st[1]}, {st[1]}, {786432 + 4096}")
        add64(sK, pK, st[1])
        add64(sV, pV, st[1])
        A(f"v_xor_b32 {dt[0]}, v1, v2")
        A(f"v_lshlrev_b32 {dt[0]}, 4, {dt[0]}")
        A(f"v_lshl_add_u32 {dA[0]}, v1, 8, {dt[0]}")
        for k in range(1, 4):
            A(f"v_xor_b32 {dA[k]}, {64*k}, {dA[0]}")
        A(f"v_lshlrev_b32 {dt[0]}, 1, v1")
        A(f"v_xor_b32 {dt[0]}, {dt[0]}, v2")
        A(f"v_lshlrev_b32 {dt[0]}, 4, {dt[0]}")
        A(f"v_lshl_add_u32 {dV[0]}, v1, 8, {dt[0]}")
        A(f"v_xor_b32 {dV[1]}, 0x80, {dV[0]}")
        A(f"v_lshl_add_u32 {dW[0]}, v4, 10, v3")
        four(dW, 1024)
        A(f"s_lshl_b32 {st[4]}, {sSp}, 7")
        A(f"s_lshl_b32 {st[0]}, {sHB}, 16")
        A(f"s_add_u32 {st[0]}, {st[0]}, {st[4]}")
        A(f"s_and_b32 {st[1]}, {sB}, 1")
        A(f"s_lshl_b32 {st[1]}, {st[1]}, 15")
        A(f"s_lshl_b32 {sKR}, {sFV}, 15")
        A(f"s_cselect_b32 {st[1]}, 0, {st[1]}")
        A(f"s_add_u32 {st[0]}, {st[0]}, {st[1]}")
        add64(sW2, pW2, st[0])
        A(f"s_lshl_b32 {st[0]}, s4, 2")
        A(f"s_add_u32 {st[0]}, {st[0]}, {sB}")
        A(f"s_lshl_b32 {st[0]}, {st[0]}, 17")
        A(f"s_add_u32 {st[0]}, {st[0]}, {st[4]}")
        add64(sWO, pWO, st[0])
        A(f"v_mov_b32 {dSY}, {L_SY}")
        A(f"v_mov_b32 {dON}, 1")
        A(f"s_mov_b32 {sSY}, 0x200000")
        A(f"s_load_dword {sTAG}, {pWS}, {W_EP}")
        rot = opts.get("rot", 4)
        sh = 13 if KG == 8 else 12
        if rot == 1:
            A(f"s_lshl_b32 {sROT}, {sSp}, {sh}")
        elif rot == 2:
            A(f"s_add_u32 {sROT}, {sSp}, {sB}")
            A(f"s_add_u32 {sROT}, {sROT}, s4")
            A(f"s_lshl_b32 {sROT}, {sROT}, {sh}")
        elif rot == 4:
            A(f"s_mov_b32 {sROT}, 0")
        elif rot == 5:
            A(f"s_lshl_b32 {sROT}, {sB}, 1")
            A(f"s_add_u32 {sROT}, {sROT}, s4")
            A(f"s_lshl_b32 {sROT}, {sROT}, {sh}")
        elif rot == 3:
            A(f"s_lshl_b32 {sROT}, {sB}, 1")
            A(f"s_add_u32 {sROT}, {sROT}, {sSp}")
            A(f"s_add_u32 {sROT}, {sROT}, s4")
            A(f"s_lshl_b32 {sROT}, {sROT}, {sh}")
    def signal(off):
        if off == 4: A("s_waitcnt lgkmcnt(0)")
        A("s_mov_b64 exec, 1")
        A(f"ds_add_u32 {dSY}, {dON} offset:{off}")
        A("s_mov_b64 exec, -1")
    done = set(); pend = []
    FB = opts.get("fb")
    if FB:
        A("s_mov_b64 vcc, 0")
    if opts.get("cap3") and not FB:
        m_ = opts.get("capg")
        if m_ is None:
            A(f"s_and_b32 {st[0]}, {sSp}, {opts.get('capm', 7)}")
            A(f"s_cmp_eq_u32 {st[0]}, 3")
        else:
            A(f"s_lshr_b32 {st[0]}, {m_}, s4")
            A(f"s_bitcmp1_b32 {st[0]}, 0")
        A("s_cselect_b64 vcc, -1, 0")
        if opts.get("capboth"):
            A(f"s_and_b32 {st[0]}, {sSp}, 3")
            A(f"s_cmp_eq_u32 {st[0]}, 3")
            A("s_cselect_b64 vcc, -1, vcc")
    while not all(k_ == "F" for k_, _ in seq[:FIRST]): FIRST -= 4
    for n, (kd, u) in enumerate(seq):
        if n == FIRST:
            if opts.get("lateb"): A("s_barrier")
            setup_rest()
        if n == FIRST and opts.get("ldgate", 0):
            C("hold back until the wq tile has landed, so that the compute waves' stores do not queue behind these loads")
            LB("L_ldw")
            A(f"ds_read_b32 {dt[0]}, {dSY}")
            A(f"s_sub_u32 {sSY}, {sSY}, 1")
            A("s_cbranch_scc1 L_end")
            A("s_waitcnt lgkmcnt(0)")
            A(f"v_readfirstlane_b32 {st[0]}, {dt[0]}")
            A(f"s_cmp_lt_u32 {st[0]}, {opts.get('ldgate', 0)}")
            A("s_cbranch_scc1 L_ldw")
            TS(2)
        if n == len(seq) - opts.get("holdn", 0) and opts.get("holdn", 0):
            for k2, off, ts in SIGS:
                if k2 not in done:
                    A(f"s_waitcnt vmcnt({n - 1 - last[k2]})")
                    signal(off); TS(ts); done.add(k2)
            C("the last loads wait for the compute waves' first poll of the o partials, which would otherwise return behind them")
            LB("L_ldh")
            A(f"ds_read_b32 {dt[0]}, {dSY} offset:36")
            A(f"s_sub_u32 {sSY}, {sSY}, 1")
            A("s_cbranch_scc1 L_end")
            A("s_waitcnt lgkmcnt(0)")
            A(f"v_readfirstlane_b32 {st[0]}, {dt[0]}")
            A(f"s_cmp_lt_u32 {st[0]}, 4")
            A("s_cbranch_scc1 L_ldh")
        CAP = opts.get("cap", 24) if n < opts.get("sw", 999) else opts.get("cap2", 30)
        SIG = None
        if FB and n == FIRST:
            A("s_load_dword s93, s[28:29], 0")
        if FB and n >= FB["n0"] and (n - FB["n0"]) % FB["step"] == 0:
            A("s_memrealtime s[90:91]")
            A("s_waitcnt lgkmcnt(0)")
            if n == FB["n0"]:
                A("s_not_b32 s93, s93")
                A("s_sub_u32 s92, s92, s93")
                A("s_cmp_lt_u32 s92, 400")
                A("s_cselect_b32 s92, s92, 0")
                A("s_sub_u32 s93, s88, s92")
            A("s_sub_u32 s90, s90, s93")
            A("s_cmp_lg_u64 vcc, 0")
            dcap = opts["cap3"] - opts["cap"]
            A(f"s_cselect_b32 s91, {int(100*(FB['a'] + FB['b']*(n - dcap)))}, {int(100*(FB['a'] + FB['b']*n))}" if False else f"s_cselect_b32 s91, {int(100*FB['b']*dcap)}, 0")
            A("s_add_u32 s90, s90, s91")
            A(f"s_cmp_gt_u32 s90, {int(100*(FB['a'] + FB['b']*n))}")
            A("s_cselect_b64 vcc, -1, 0")
        if opts.get("cap3"):
            C3 = opts["cap3"]
            if n >= CAP:
                A(f"s_cbranch_vccnz L_c{n}")
                A(f"s_waitcnt vmcnt({CAP-1})")
                for k2, off, ts in SIGS:
                    if ("lo", k2) not in done and n - CAP >= last[k2]:
                        signal(off); done.add(("lo", k2))
                hi = [x for x in SIGS if ("hi", x[0]) not in done and n - C3 >= last[x[0]]]
                if hi: A(f"s_branch L_d{n}")
                LB(f"L_c{n}")
                if n >= C3: A(f"s_waitcnt vmcnt({C3-1})")
                for k2, off, ts in hi:
                    signal(off); done.add(("hi", k2)); done.add(k2)
                if hi: LB(f"L_d{n}")
        elif n >= CAP:
            A(f"s_waitcnt vmcnt({CAP-1})")
            for k2, off, ts in SIGS:
                if k2 not in done and n - CAP >= last[k2]:
                    signal(off); TS(ts); done.add(k2)
        base, regs, grp, lb, adv, bias = {"F": (sF, dF, 4, L_W1, 32*3584, 0), "K": (sK, dA, KG, L_KK, KG*1024, 4096), "V": (sV, dV, KG, L_VV, KG*1024, 4096),
                                     "W": (sW2, dW, 4, L_W2, sKR, 0), "O": (sWO, dW, 4, L_WO, 32768, 0)}[kd]
        rot = opts.get("rot", 4)
        if kd == "F" and u % grp == 0 and u >= 8:
            assert n < min(m_ for m_, (k_, _) in enumerate(seq) if k_ != "F")
            A(f"s_cmp_eq_u32 {sFV}, 0")
            A(f"s_cbranch_scc1 L_skip{n}")
            pend.append((n + grp - 1, f"L_skip{n}"))
        if u % grp == 0 and kd in "KV" and rot:
            if opts.get("diag8", 1):
                A(f"s_add_u32 {st[0]}, {sSp}, {(u // 4) * opts.get('dstep', 1)}")
                A(f"s_and_b32 {st[0]}, {st[0]}, 7")
                A(f"s_lshl_b32 {st[0]}, {st[0]}, 12")
                A(f"s_add_u32 {st[0]}, {st[0]}, {(u // 4) * 32768}")
                A(f"s_mov_b32 m0, {lb + bias + u * 1024}")
            else:
                A(f"s_add_u32 {st[0]}, {sROT}, {u * 1024}")
                A(f"s_and_b32 {st[0]}, {st[0]}, 0x7000")
                A(f"s_add_u32 m0, {st[0]}, {lb + bias}")
                if opts.get("il", 1):
                    assert KG == 4
                    A(f"s_lshl_b32 {st[0]}, {st[0]}, 3")
            A(f"s_add_u32 {sM[2][0]}, {base[0]}, {st[0]}")
            A(f"s_addc_u32 {sM[2][1]}, {base[1]}, 0")
        elif u % grp == 0:
            A(f"s_mov_b32 m0, {lb + u*1024 + bias}")
            if u:
                A(f"s_add_u32 {base[0]}, {base[0]}, {adv}")
                A(f"s_addc_u32 {base[1]}, {base[1]}, 0")
            else:
                A("s_nop 0")
        if kd in "KV" and rot: base = sM[2]
        A(f"global_load_lds_dwordx4 {regs[u % len(regs)]}, {base} offset:{(u % grp)*1024 - bias} {nt}")
        if pend and pend[-1][0] == n: LB(pend.pop()[1])
    for k2, off, ts in SIGS:
        if k2 not in done:
            if ("lo", k2) in done: A(f"s_cbranch_vccz L_e{k2}")
            A(f"s_waitcnt vmcnt({len(seq) - 1 - last[k2]})")
            signal(off); TS(ts)
            if ("lo", k2) in done: LB(f"L_e{k2}")
    LB("L_FIN")
    if opts.get("fprio"): A(f"s_setprio {opts['fprio']}")
    TS(5)
    C("idx = (i>>1)*8 + g = (c*4+b)*4 + w ; half = i&1 ; element b*512 + c*64 + (2w+half)*8 + 4*(l&1) + g4")
    A(f"s_lshr_b32 {st[1]}, s5, 1")
    A(f"s_lshl_b32 {st[1]}, {st[1]}, 3")
    A(f"s_add_u32 {st[1]}, {st[1]}, s4")
    if opts.get("idxx"): A(f"s_xor_b32 {st[1]}, {st[1]}, {opts['idxx']}")
    A(f"s_and_b32 {st[2]}, s5, 1")
    A(f"s_bfe_u32 {st[0]}, {st[1]}, 0x20002")
    A(f"s_lshl_b32 {st[0]}, {st[0]}, 9")
    A(f"s_lshr_b32 {st[4]}, {st[1]}, 4")
    A(f"s_lshl_b32 {st[4]}, {st[4]}, 6")
    A(f"s_add_u32 {st[0]}, {st[0]}, {st[4]}")
    A(f"s_and_b32 {st[4]}, {st[1]}, 3")
    A(f"s_lshl_b32 {st[4]}, {st[4]}, 4")
    A(f"s_add_u32 {st[0]}, {st[0]}, {st[4]}")
    A(f"s_lshl_b32 {st[4]}, {st[2]}, 3")
    A(f"s_add_u32 {st[0]}, {st[0]}, {st[4]}")
    A(f"v_and_b32 {dt[0]}, 1, v0")
    A(f"v_lshl_add_u32 {dt[0]}, {dt[0]}, 2, v1")
    A(f"v_add_lshl_u32 {dXO}, {dt[0]}, {st[0]}, 1")
    A(f"global_load_ushort {dXR}, {dXO}, {pX}")
    if D2 is not None:
        A(f"s_and_b32 {st[4]}, {st[1]}, 1")
        A(f"s_lshr_b32 {st[1]}, {st[1]}, 1")
        A(f"s_lshl2_add_u32 {st[1]}, {st[1]}, {st[4]}")
        A(f"s_lshr_b32 {st[4]}, s4, 2")
        A(f"s_xor_b32 {st[4]}, {st[4]}, {D2}")
        if opts.get("one") or NEAR: A(f"s_mov_b32 {st[4]}, 0")
        A(f"s_lshl1_add_u32 {st[1]}, {st[4]}, {st[1]}")
    A(f"s_lshl_b32 {st[0]}, {st[1]}, {12+DU}")
    A(f"s_lshl_b32 {st[4]}, {st[2]}, 6")
    A(f"s_add_u32 {st[0]}, {st[0]}, {st[4]}")
    A(f"s_add_u32 {st[0]}, {st[0]}, {W_P3 + 4096*DU}")
    A(f"v_lshrrev_b32 {dt[0]}, 2, v0")
    A(f"v_and_b32 {dDP}, 3, v0")
    A(f"v_lshlrev_b32 {dDP}, 4, {dDP}")
    A(f"v_lshl_add_u32 {dDP}, {dt[0]}, 7, {dDP}")
    A(f"v_add_u32 {dDP}, {st[0]}, {dDP}")
    A(f"s_mov_b32 {sCNT}, {0x40 if opts.get('no2') else 0x40000}")
    A(f"s_mov_b32 {sHI}, 0xffff0000")
    A("s_waitcnt lgkmcnt(0)")
    tagbytes()
    A(f"v_mov_b32 {dXT}, {sTAG}")
    if opts.get("orem", 10):
        if opts.get("orem1", 0):
            A(f"s_waitcnt vmcnt({opts.get('orem1', 0) + 1})")
            signal(12)
        A(f"s_waitcnt vmcnt({opts.get('orem', 10) + 1})")
        signal(12)
    A("s_waitcnt vmcnt(1)")
    TS(7)
    if opts.get("so"):
        TS(10)
        TSDUMP(16)
        A("s_endpgm")
    signal(24)
    LB("L_dw")
    A(f"ds_read_b32 {dt[0]}, {dSY} offset:28")
    A(f"s_sub_u32 {sSY}, {sSY}, 1")
    A("s_cbranch_scc1 L_end")
    A("s_waitcnt lgkmcnt(0)")
    A(f"v_readfirstlane_b32 {st[0]}, {dt[0]}")
    A(f"s_cmp_lt_u32 {st[0]}, 4")
    A("s_cbranch_scc1 L_dw")
    if NEAR:
        A(f"ds_read_b32 {dt[0]}, {dSY} offset:32")
        A("s_waitcnt lgkmcnt(0)")
        A(f"v_add_u32 {dDP}, {dt[0]}, {dDP}")
    TS(8)
    NP = 2 if DU else opts.get("npoll", 1)
    dPs = [dP] + [VD.alloc(f'p{k}', 8, 4) for k in range(1, NP)]
    def dld(r):
        cp = (dPs.index(r) - 1) * 4096 if DU else 0
        for u in range(2):
            A(f"global_load_dwordx4 {r[4*u:4*u+4]}, {dDP}, {pWS} offset:{u*2048 + cp} {opts.get('dlf', 'sc1')}")
    if opts.get("dmask", 0):
        assert NP == 1
        sD_ = [sM[0], sM[1]]
        for u in range(2): A(f"s_mov_b64 {sD_[u]}, -1")
        LB("L_dpoll")
        for u in range(2):
            A(f"s_mov_b64 exec, {sD_[u]}")
            A(f"s_cbranch_execz L_dsk{u}")
            A(f"global_load_dwordx4 {dP[4*u:4*u+4]}, {dDP}, {pWS} offset:{u*2048} sc1")
            LB(f"L_dsk{u}")
        A("s_waitcnt vmcnt(0)")
        for u in range(2):
            A(f"s_mov_b64 exec, {sD_[u]}")
            tagcheck([dP[4*u+x] for x in range(4)], dt[1], dst=str(sD_[u]))
        A("s_mov_b64 exec, -1")
        A(f"s_or_b64 vcc, {sD_[0]}, {sD_[1]}")
        A("s_cbranch_scc0 L_dok0")
    else:
        A("s_waitcnt vmcnt(0)")
        A(f"v_lshlrev_b32 {dXR}, 16, {dXR}")
        A(f"s_mov_b32 {sA[0]}, 0x00030003")
        A(f"s_mov_b32 {sA[1]}, 0x00030003")
        C("back off before the first poll: a read that overtakes the write it waits for makes both slower")
        if opts.get("dsl0", 15): A(f"s_sleep {opts.get(chr(100)+chr(115)+chr(108)+chr(48), 15)}")
        for r in dPs: dld(r)
        LB("L_dpoll")
        for k, r in enumerate(dPs):
            A(f"s_waitcnt vmcnt({2*(NP-1)})")
            tagcheck([r[x] for x in range(8)], dt[1])
            A(f"s_cbranch_vccz L_dok{k}")
            if opts.get("dsl"): A(f"s_sleep {opts['dsl']}")
            dld(r)
    A(f"s_sub_u32 {sCNT}, {sCNT}, 1")
    A("s_cbranch_scc0 L_dpoll")
    A("s_endpgm")
    for k in range(NP-1, 0, -1):
        LB(f"L_dok{k}")
        A(f"v_pk_add_f32 {dPs[k][0:2]}, {dPs[k][0:2]}, {dPs[k][4:6]}")
        A(f"v_pk_add_f32 {dPs[k][2:4]}, {dPs[k][2:4]}, {dPs[k][6:8]}")
        A(f"s_branch L_dsum{k}")
    LB("L_dok0")
    dQ = VD.alloc('q', 4, 4)
    A(f"v_pk_add_f32 {dP[0:2]}, {dP[0:2]}, {dP[4:6]}")
    A(f"v_pk_add_f32 {dP[2:4]}, {dP[2:4]}, {dP[6:8]}")
    for k in range(NP):
        LB(f"L_dsum{k}")
        A("s_nop 0")
        for r in range(4):
            A(f"v_add_f32_dpp {dQ[r]}, {dPs[k][r]}, {dPs[k][r]} row_ror:4 row_mask:0xf bank_mask:0xf")
        if k < NP-1: A("s_branch L_dfin")
    LB("L_dfin")
    TS(9)
    C("every workgroup has read the epoch word by now: workgroup 0 moves it on for the next launch")
    A("s_cmp_eq_u32 s2, 0")
    A("s_cbranch_scc0 L_noep")
    A("s_mov_b64 exec, 1")
    A(f"v_mov_b32 {dt[0]}, 0")
    A(f"global_store_dword {dt[0]}, {dXT}, {pWS}")
    A("s_mov_b64 exec, -1")
    LB("L_noep")
    for r in range(4):
        A(f"v_add_f32_dpp {dQ[r]}, {dQ[r]}, {dQ[r]} row_ror:8 row_mask:0xf bank_mask:0xf")
    dP = dQ
    rowsT(dP)
    rbf(dP[0])
    silu(dP[1], dP[0])
    A("s_nop 1")
    A(f"v_mul_f32_dpp {dP[1]}, {dP[1]}, {dP[0]} quad_perm:[2,3,0,1] row_mask:0xf bank_mask:0xf")
    rbf(dP[1])
    A(f"v_add_f32 {dP[1]}, {dXR}, {dP[1]}")
    A(f"v_cvt_pk_bf16_f32 {dP[1]}, {dP[1]}, {dP[1]}")
    A(f"s_mov_b64 exec, {sA}")
    A(f"global_store_short {dXO}, {dP[1]}, {pOUT} {opts.get('outf', '')}")
    LB("L_lend")
    if opts.get("hold"):
        A("s_waitcnt lgkmcnt(0)")
        if opts.get("amp") is not None:
            A("s_sub_u32 s94, s94, s98")
            A("s_lshl_b32 s94, s94, 2")
            A(f"s_add_u32 s94, s94, {opts['hold']}")
        else:
            A(f"s_mov_b32 s94, {opts['hold']}")
        LB("L_hold")
        A("s_memrealtime s[96:97]")
        A("s_waitcnt lgkmcnt(0)")
        A("s_sub_u32 s96, s96, s98")
        A(f"s_cmp_lt_u32 s96, s94")
        A("s_cbranch_scc1 L_hold")
    TS(10); CN(15)
    TSDUMP(16)
    A("s_endpgm")

    ampctx[0] = False
    LB("L_Q2")
    if opts.get("spad"):
        A("s_getpc_b64 s[90:91]")
        LB("L_q2pc")
        A("s_add_u32 s90, s90, L_end-L_q2pc")
        A("s_addc_u32 s91, s91, 0")
    C("projection addresses: tr (n-block w) in qTRw, xn operands in qTRb / qXF")
    A(f"v_lshrrev_b32 {qt[0]}, 2, v2")
    A(f"v_lshl_add_u32 {qt[0]}, v1, 3, {qt[0]}")
    A(f"v_lshlrev_b32 {qTRw}, 7, {qt[0]}")
    A(f"v_and_b32 {qt[1]}, 3, v0")
    A(f"v_lshl_add_u32 {qTRw}, {qt[1]}, 3, {qTRw}")
    A(f"v_bfe_u32 {qt[0]}, v0, 3, 2")
    A(f"v_xor_b32 {qt[0]}, {sW}, {qt[0]}")
    A(f"v_lshl_add_u32 {qTRw}, {qt[0]}, 5, {qTRw}")
    A(f"v_mul_u32_u24 {qt[0]}, {XN_ST}, {qt[1]}")
    A(f"v_lshl_add_u32 {qt[0]}, v1, 4, {qt[0]}")
    A(f"s_lshl_b32 {st[0]}, {sB}, 8")
    A(f"s_add_u32 {st[0]}, {st[0]}, {L_XN}")
    A(f"v_add_u32 {qTRb}, {st[0]}, {qt[0]}")
    A(f"s_lshl_b32 {st[0]}, {sKF}, {sFV}")
    A(f"s_lshl_b32 {st[0]}, {st[0]}, 7")
    A(f"s_add_u32 {st[0]}, {st[0]}, {L_XN}")
    A(f"v_add_u32 {qXF}, {st[0]}, {qt[0]}")
    A(f"s_lshl_b32 {st[0]}, s4, 4")
    A(f"s_add_u32 {st[0]}, {st[0]}, {sB}")
    A(f"s_lshl_b32 {st[0]}, {st[0]}, 3")
    A(f"s_add_u32 {st[0]}, {st[0]}, {sCB}")
    A(f"s_lshl_b32 {st[0]}, {st[0]}, 2")
    A(f"s_add_u32 {st[0]}, {st[0]}, {sW}")
    A(f"s_lshl_b32 {st[0]}, {st[0]}, 6")
    A(f"s_add_u32 {st[0]}, {st[0]}, {W_Q1}")
    A(f"v_lshlrev_b32 {qQPUB}, 13, {qt[1]}")
    A(f"v_lshl_add_u32 {qQPUB}, v1, 4, {qQPUB}")
    A(f"v_add_u32 {qQPUB}, {st[0]}, {qQPUB}")
    C("H1 + ((m*4+b)*8+slot)*7168 + hb*256 + w*64 + g4*16")
    A(f"s_and_b32 {st[0]}, {sSp}, 1")
    A(f"s_lshl_b32 {st[0]}, {st[0]}, 5")
    A(f"s_add_u32 {st[0]}, {st[0]}, {sKF}")
    A(f"s_mul_i32 {st[0]}, {st[0]}, 7168")
    A(f"s_lshl_b32 {st[2]}, {sHB}, 8")
    A(f"s_add_u32 {st[0]}, {st[0]}, {st[2]}")
    A(f"s_add_u32 {st[0]}, {st[0]}, {W_H1}")
    A(f"s_lshl_b32 {st[2]}, {sW}, 6")
    A(f"s_add_u32 {st[0]}, {st[0]}, {st[2]}")
    A(f"v_mul_u32_u24 {qFPUB}, {8*7168}, {qt[1]}")
    A(f"v_lshl_add_u32 {qFPUB}, v1, 4, {qFPUB}")
    A(f"v_add_u32 {qFPUB}, {st[0]}, {qFPUB}")
    A(f"v_mov_b32 {qFF}, 0xffffff00")
    for k in range(4):
        A(f"s_mov_b32 {sM[k][0]}, {0x000f000f << (4*k):#x}")
        A(f"s_mov_b32 {sM[k][1]}, {0x000f000f << (4*k):#x}")
    A(f"s_or_b64 {sBb}, {sM[0]}, {sM[1]}")
    A(f"s_lshl_b32 {st[2]}, s4, 2")
    A(f"s_add_u32 {st[2]}, {st[2]}, {sB}")
    A(f"v_mov_b32 {qSY}, {L_SY}")
    A(f"v_mov_b32 {qON}, 1")
    A(f"s_mov_b32 {sSY}, 0x200000")
    A(f"s_mov_b32 {sFB}, {NFAIL}")
    A(f"s_mov_b32 {sCNT}, 0x40000")
    A(f"s_lshl_b32 {st[4]}, {st[2]}, 13")
    A(f"s_lshl_b32 {st[5]}, {sW}, 9")
    A(f"s_add_u32 {st[4]}, {st[4]}, {st[5]}")
    A(f"s_add_u32 {st[4]}, {st[4]}, {W_Q1 + 2048}")
    A(f"v_lshrrev_b32 {qt[3]}, 5, v0")
    A(f"v_and_b32 {qt[2]}, 31, v0")
    A(f"v_lshlrev_b32 {qQP}, 4, {qt[2]}")
    A(f"v_lshl_add_u32 {qQP}, {qt[3]}, 11, {qQP}")
    A(f"v_add_u32 {qQP}, {st[4]}, {qQP}")
    A(f"s_mul_i32 {st[4]}, {sW}, {QL_ST}")
    A(f"s_add_u32 {st[4]}, {st[4]}, {L_QL}")
    A(f"v_lshlrev_b32 {qQW}, 3, {qt[2]}")
    A(f"v_lshl_add_u32 {qQW}, {qt[3]}, 2, {qQW}")
    A(f"v_add_u32 {qQW}, {st[4]}, {qQW}")
    A("s_waitcnt lgkmcnt(0)")
    tagbytes()
    C("q granules in the in-L2 copy carry the writer's die id: when all of them match, the whole group shares this L2")
    A(f"s_getreg_b32 {sXC}, hwreg(HW_REG_XCC_ID, 0, 3)")
    A(f"s_lshl_b32 {sXC}, {sXC}, 4")
    A(f"s_xor_b32 {sTQ}, {sT[0]}, {sXC}")
    A("s_waitcnt vmcnt(0)")
    TS(2)
    def bk(which):
        out = []
        t = qt[4]
        for w in which:
            addr, data, mask = {"q": (qQPUB, qBQ, sM[0]), "h": (qFPUB, qBH, sM[0]), "o": (qOPUB, qG, sBb)}[w]
            out += [f"v_add_u32 {t}, {DELTA}, {addr}", f"s_mov_b64 exec, {mask}", f"global_store_dwordx4 {t}, {data}, {pWS} sc1", "s_mov_b64 exec, -1"]
        return out
    nslow = [0]
    def slow(which, back, ex=None, poll=None):
        n = nslow[0]; nslow[0] += 1
        T = TAIL
        T.append(f"L_slow{n}:")
        T.append("  s_mov_b64 exec, -1")
        if poll:
            T.append(f"  s_cmp_eq_u32 {sFB}, 0")
            T.append(f"  s_cbranch_scc0 L_slowr{n}")
        for x in bk(which): T.append("  " + x)
        if poll == "q":
            T.append(f"  ds_write_b32 {qSY}, {qON} offset:40")
        if poll:
            T.append(f"L_slowr{n}:")
            r = qQP if poll == "q" else qOP
            T.append(f"  v_xor_b32 {r}, {DELTA}, {r}")
            if poll == "q": T.append(f"  s_xor_b32 {sTQ}, {sTQ}, {sXC}")
        if ex: T.append(f"  s_mov_b64 exec, {ex}")
        T.append(f"  s_branch {back}")
        return f"L_slow{n}"
    def qsync(k, target, trig=None, add=True, tmp=None, lbl=None, spec=None, nspec=0):
        tmp = tmp or qt[0]
        lbl = lbl or str(k)
        if spec and opts.get("spec", 1):
            C("rendezvous through an LDS counter; the reads that follow it are issued behind the counter read (LDS works in order)")
            assert not add
            LB(f"L_sy{lbl}")
            A(f"ds_read_b32 {tmp}, {qSY} offset:{4*k}")
            spec()
            A(f"s_sub_u32 {sSY}, {sSY}, 1")
            A("s_cbranch_scc1 L_end")
            if trig:
                A(f"s_and_b32 {st[1]}, {sSY}, 0x3ff")
                A(f"s_cbranch_scc0 {slow(trig, f'L_sy{lbl}')}")
            A(f"s_waitcnt lgkmcnt({nspec})")
            A(f"v_readfirstlane_b32 {st[1]}, {tmp}")
            A(f"s_cmp_lt_u32 {st[1]}, {target}")
            A(f"s_cbranch_scc1 L_sy{lbl}")
            return
        C("rendezvous through an LDS counter")
        A("s_mov_b64 exec, 1")
        if add: A(f"ds_add_u32 {qSY}, {qON} offset:{4*k}")
        LB(f"L_sy{lbl}")
        A(f"ds_read_b32 {tmp}, {qSY} offset:{4*k}")
        A(f"s_sub_u32 {sSY}, {sSY}, 1")
        A("s_cbranch_scc1 L_ret" if opts.get("spad") else "s_cbranch_scc1 L_end")
        if trig:
            A(f"s_and_b32 {st[1]}, {sSY}, 0x3ff")
            A(f"s_cbranch_scc0 {slow(trig, f'L_sy{lbl}', 1)}")
        A("s_waitcnt lgkmcnt(0)")
        A(f"v_readfirstlane_b32 {st[1]}, {tmp}")
        A(f"s_cmp_lt_u32 {st[1]}, {target}")
        A(f"s_cbranch_scc1 L_sy{lbl}")
        A("s_mov_b64 exec, -1")
        if spec: spec()
    def proj(xaddr, lbase, pub, dst, half=False):
        for ks in range(4):
            A(f"ds_read_b128 {qQB[4*ks:4*ks+4]}, {xaddr} offset:{ks*64}")
            for T in range(2):
                A(f"ds_read_b64_tr_b16 {qVT[4*ks+2*T:4*ks+2*T+2]}, {qTRw} offset:{lbase+ks*4096+T*512}")
        if half: A(f"s_cmp_eq_u32 {sFV}, 0")
        for ks in range(4):
            if half and ks == 2: A("s_cbranch_scc1 L_phalf")
            A(f"s_waitcnt lgkmcnt({9-3*ks})")
            A(f"v_mfma_f32_16x16x32_bf16 {dst}, {qVT[4*ks:4*ks+4]}, {qQB[4*ks:4*ks+4]}, {'0' if ks == 0 else dst}")
        if half: LB("L_phalf")
        A(f"s_mov_b64 exec, {sM[0]}")
        A(f"s_nop 6")
        for k in range(4):
            A(f"v_and_or_b32 {dst[k]}, {dst[k]}, {qFF}, {sTQ if (k == 0 and not half) else sT[k]}")
        A(f"global_store_dwordx4 {pub}, {dst}, {pWS} {opts.get('pst','')}")
        A("s_mov_b64 exec, -1")
        if not half:
            A("s_nop 0")
            A(f"v_xor_b32 {dst[0]}, {sXC}, {dst[0]}")
    qsync(0, 5)
    C("q projection, n-block w")
    proj(qTRb, L_WQ, qQPUB, qBQ)
    TS(3)
    A(f"s_lshl_b32 {st[0]}, s4, 2")
    A(f"s_add_u32 {st[0]}, {st[0]}, {sW}")
    A(f"s_lshl_b32 {st[0]}, {st[0]}, 2")
    A(f"s_add_u32 {st[0]}, {st[0]}, {sB}")
    A(f"s_lshl_b32 {st[0]}, {st[0]}, 12")
    A(f"s_add_u32 {st[0]}, {st[0]}, {W_O2}")
    A(f"v_lshlrev_b32 {qOP}, 4, {qt[2]}")
    A(f"v_lshl_add_u32 {qOP}, {qt[3]}, 11, {qOP}")
    A(f"v_add_u32 {qOP}, {st[0]}, {qOP}")
    qsync(1, 1, add=False)
    C("gate / up projection, n-block w")
    proj(qXF, L_W1, qFPUB, qBH, True)
    TS(12)
    def ld_q(r=None):
        r = r or qQ
        A(f"global_load_dwordx4 {r[0:4]}, {qQP}, {pWS} offset:-2048 sc1")
        A(f"global_load_dwordx4 {r[4:8]}, {qQP}, {pWS} offset:2048 sc1")
    def ld_o(r=None):
        r = r or qO
        for u in range(4):
            A(f"global_load_dwordx4 {r[4*u:4*u+4]}, {qOP}, {pWS} offset:{u*512} sc1")
    if opts.get("q2", 1): ld_q(qQ2)
    TS(4)
    C("more addresses (qt1 = hd, qt2 = t, st2 = g*4+b = head)")
    A(f"v_add_u32 {qTRw}, {L_WO}, {qTRw}")
    A(f"s_lshl_b32 {st[0]}, {st[2]}, 14")
    A(f"s_lshl_b32 {st[4]}, {sSp}, 9")
    A(f"s_add_u32 {st[0]}, {st[0]}, {st[4]}")
    A(f"s_lshl_b32 {st[4]}, {sW}, 7")
    A(f"s_add_u32 {st[0]}, {st[0]}, {st[4]}")
    A(f"s_add_u32 {st[0]}, {st[0]}, {W_O2}")
    A(f"v_bfe_u32 {qt[2]}, v0, 2, 2")
    A(f"v_lshlrev_b32 {qOPUB}, 12, {qt[1]}")
    A(f"v_lshl_add_u32 {qOPUB}, {qt[2]}, 6, {qOPUB}")
    A(f"v_lshl_add_u32 {qOPUB}, v1, 4, {qOPUB}")
    A(f"v_add_u32 {qOPUB}, {st[0]}, {qOPUB}")
    A(f"s_lshl_b32 {st[0]}, {sW}, 13")
    A(f"s_add_u32 {st[0]}, {st[0]}, {L_KK}")
    A(f"v_xor_b32 {qt[0]}, v1, v2")
    A(f"v_lshlrev_b32 {qt[0]}, 4, {qt[0]}")
    A(f"v_lshl_add_u32 {qt[0]}, v2, 8, {qt[0]}")
    A(f"v_add_u32 {qKA[0]}, {st[0]}, {qt[0]}")
    for k in range(1, 4):
        A(f"v_xor_b32 {qKA[k]}, {64*k}, {qKA[0]}")
    A(f"v_lshrrev_b32 {qt[0]}, 2, v0")
    A(f"v_and_b32 {qt[3]}, 7, {qt[0]}")
    A(f"s_lshl_b32 {st[0]}, {sW}, 1")
    A(f"v_xor_b32 {qt[3]}, {st[0]}, {qt[3]}")
    A(f"v_lshlrev_b32 {qTRa}, 8, {qt[0]}")
    A(f"v_lshl_add_u32 {qTRa}, {qt[3]}, 5, {qTRa}")
    A(f"v_lshl_add_u32 {qTRa}, {qt[1]}, 3, {qTRa}")
    A(f"v_add_u32 {qTRa}, {L_VV}, {qTRa}")
    A(f"v_xor_b32 {qTRb}, 32, {qTRa}")
    A(f"v_mul_u32_u24 {qt[5]}, {QL_ST}, {qt[1]}")
    A(f"v_lshl_add_u32 {qt[5]}, v1, 4, {qt[5]}")
    A(f"v_add_u32 {qQR}, {L_QL}, {qt[5]}")
    A(f"v_lshlrev_b32 {qt[0]}, 6, {qt[1]}")
    A(f"v_lshl_add_u32 {qt[0]}, v1, 4, {qt[0]}")
    A(f"s_lshl_b32 {st[0]}, {sW}, 8")
    A(f"s_add_u32 {st[0]}, {st[0]}, {L_PL}")
    A(f"v_add_u32 {qPW}, {st[0]}, {qt[0]}")
    A(f"v_add_u32 {qt[3]}, {L_PL}, {qt[0]}")
    A(f"v_mov_b32 {qt[4]}, {L_ZR}")
    for k in range(2):
        A(f"v_cndmask_b32 {qPBA[k]}, {qt[4]}, {qt[3]}, {sM[k]}")
    A(f"v_lshl_add_u32 {qt[3]}, {qt[1]}, 7, {qt[0]}")
    A(f"v_add_u32 {qt[3]}, {L_HL}, {qt[3]}")
    if ONE: A(f"s_or_b64 {sA}, {sM[1]}, {sM[3]}")
    A(f"v_cndmask_b32 {qHA}, {qt[4]}, {qt[3]}, {sA if ONE else sM[1]}")
    A(f"v_add_u32 {qt[3]}, {L_OL}, {qt[5]}")
    A(f"v_cndmask_b32 {qOA}, {qt[3]}, {qt[4]}, {sA}" if ONE else f"v_cndmask_b32 {qOA}, {qt[4]}, {qt[3]}, {sM[0]}")
    A(f"v_lshlrev_b32 {qSR}, 4, {qt[1]}")
    A(f"v_add_u32 {qSR}, {L_SL}, {qSR}")
    A(f"s_lshl_b32 {st[0]}, {sW}, 2")
    A(f"v_add_u32 {qSW}, {st[0]}, {qSR}")
    A(f"s_lshl_b32 {st[0]}, {sSp}, {16+DU+(D2 is not None)}")
    if D2 is not None:
        A(f"s_and_b32 {st[4]}, {sW}, 2")
        A(f"s_lshl_b32 {st[4]}, {st[4]}, 13")
        A(f"s_add_u32 {st[0]}, {st[0]}, {st[4]}")
        A(f"s_and_b32 {st[4]}, {sW}, 1")
        A(f"s_lshl_b32 {st[4]}, {st[4]}, 12")
    else:
        A(f"s_lshl_b32 {st[4]}, {sW}, {12+DU}")
    A(f"s_add_u32 {st[0]}, {st[0]}, {st[4]}")
    A(f"s_lshl_b32 {st[4]}, {st[2]}, 7")
    A(f"s_add_u32 {st[0]}, {st[0]}, {st[4]}")
    A(f"s_add_u32 {st[0]}, {st[0]}, {W_P3 + 2048*DU}")
    A(f"v_lshlrev_b32 {qP3}, {14+DU+(D2 is not None)}, {qt[1]}")
    A(f"v_lshrrev_b32 {qt[3]}, 5, v0")
    A(f"v_lshl_add_u32 {qP3}, {qt[3]}, 6, {qP3}")
    A(f"v_bfe_u32 {qt[3]}, v0, 2, 1")
    A(f"v_lshl_add_u32 {qP3}, {qt[3]}, 5, {qP3}")
    A(f"v_bfe_u32 {qt[3]}, v0, 4, 1")
    A(f"v_lshl_add_u32 {qP3}, {qt[3]}, 4, {qP3}")
    if ONE:
        A(f"v_bfe_u32 {qt[3]}, v0, 3, 1")
        A(f"v_lshl_add_u32 {qP3}, {qt[3]}, 13, {qP3}")
    if PRI:
        C("the copy the reader is expected to take goes first: its half is b&1, this workgroup's choice tells which copy is where")
        A(f"s_lshr_b32 {st[4]}, s4, 2")
        A(f"v_xor_b32 {qt[3]}, {st[4]}, v0")
        A(f"v_and_b32 {qt[3]}, 1, {qt[3]}")
        A(f"v_lshl_add_u32 {qP3}, {qt[3]}, 13, {qP3}")
    A(f"v_add_u32 {qP3}, {st[0]}, {qP3}")
    A(f"s_mov_b32 {sHI}, 0xffff0000")
    def retry(reload, chk, which):
        poll = "q" if chk == "L_qchk" else "o"
        A(f"s_sub_u32 {sFB}, {sFB}, 1")
        A(f"s_cmp_gt_i32 {sFB}, 0")
        A(f"s_cbranch_scc0 {slow(which, chk + 'r', poll=poll)}")
        LB(chk + "r")
        reload()
        A(f"s_sub_u32 {sCNT}, {sCNT}, 1")
        A(f"s_cbranch_scc0 {chk}")
        A("s_endpgm")
    if opts.get("palign", 1):
        C("the latency-critical rest sits in one 4 KiB page (instruction prefetch stops at page ends)")
        A("s_branch L_Q3")
        L.append(".p2align 12")
        LB("L_Q3")
    C("second, later poll of the q partials (a miss of the first one would otherwise cost a whole round trip)")
    for _ in range(opts.get("qdelay", 2)): A("s_sleep 4")
    ld_q()
    if opts.get("q2", 1):
        A("s_waitcnt vmcnt(2)")
        tagcheck([qQ2[k] for k in range(8)], qt[0], t0=sTQ)
        A("s_cbranch_vccnz L_qchk")
        A(f"v_pk_add_f32 {qS[0:2]}, {qQ2[0:2]}, {qQ2[4:6]}")
        A(f"v_pk_add_f32 {qS[2:4]}, {qQ2[2:4]}, {qQ2[6:8]}")
        A("s_branch L_qok2")
    LB("L_qchk")
    A("s_waitcnt vmcnt(0)")
    tagcheck([qQ[k] for k in range(8)], qt[0], t0=sTQ)
    A("s_cbranch_vccz L_qok")
    retry(ld_q, "L_qchk", "qh")
    LB("L_qok")
    A(f"v_pk_add_f32 {qS[0:2]}, {qQ[0:2]}, {qQ[4:6]}")
    A(f"v_pk_add_f32 {qS[2:4]}, {qQ[2:4]}, {qQ[6:8]}")
    LB("L_qok2")
    TS(5)
    A("s_nop 1")
    A(f"v_permlane32_swap_b32 {qS[0]}, {qS[2]}")
    A(f"v_permlane32_swap_b32 {qS[1]}, {qS[3]}")
    A(f"v_pk_add_f32 {qS[0:2]}, {qS[0:2]}, {qS[2:4]}")
    A(f"v_cvt_pk_bf16_f32 {qS[0]}, {qS[0]}, {qS[1]}")
    A(f"ds_write_b32 {qQW}, {qS[0]}")
    qsync(2, 5, "qh")
    TS(13)
    for s_ in range(4):
        A(f"ds_read_b128 {qQB[4*s_:4*s_+4]}, {qQR} offset:{s_*64}")
        for T in range(2):
            A(f"ds_read_b128 {qKF[(s_*2+T)*4:(s_*2+T)*4+4]}, {qKA[s_]} offset:{T*4096}")
    A(f"s_mov_b32 {st[0]}, 0x3e0293ee")
    for s_ in range(4):
        A(f"s_waitcnt lgkmcnt({9-3*s_})")
        for T in range(2):
            c = "0" if s_ == 0 else str(qS[4*T:4*T+4])
            A(f"v_mfma_f32_16x16x32_bf16 {qS[4*T:4*T+4]}, {qKF[(s_*2+T)*4:(s_*2+T)*4+4]}, {qQB[4*s_:4*s_+4]}, {c}")
    TS(6)
    A("s_nop 6")
    A(f"v_max3_f32 {qt[0]}, {qS[0]}, {qS[1]}, {qS[2]}")
    A(f"v_max_f32 {qt[0]}, {qt[0]}, {qS[3]}")
    A(f"v_max3_f32 {qt[1]}, {qS[4]}, {qS[5]}, {qS[6]}")
    A(f"v_max3_f32 {qt[0]}, {qt[0]}, {qt[1]}, {qS[7]}")
    A(f"v_mov_b32 {qt[1]}, {qt[0]}")
    A("s_nop 1")
    A(f"v_permlane16_swap_b32 {qt[0]}, {qt[1]}")
    A(f"v_max_f32 {qt[0]}, {qt[0]}, {qt[1]}")
    A(f"v_mov_b32 {qt[1]}, {qt[0]}")
    A("s_nop 1")
    A(f"v_permlane32_swap_b32 {qt[0]}, {qt[1]}")
    A(f"v_max_f32 {qt[0]}, {qt[0]}, {qt[1]}")
    A(f"v_mul_f32 {qt[0]}, {st[0]}, {qt[0]}")
    for k in range(8):
        A(f"v_fma_f32 {qS[k]}, {qS[k]}, {st[0]}, -{qt[0]}")
    for k in range(8):
        A(f"v_exp_f32 {qS[k]}, {qS[k]}")
    for k in range(4):
        A(f"v_cvt_pk_bf16_f32 {qP[k]}, {qS[2*k]}, {qS[2*k+1]}")
    A(f"v_pk_add_f32 {qL4[0:2]}, {qS[0:2]}, {qS[2:4]}")
    A(f"s_mov_b64 exec, {sM[0]}")
    A(f"ds_write_b128 {qPW}, {qP}")
    A("s_mov_b64 exec, -1")
    A(f"v_pk_add_f32 {qL4[2:4]}, {qS[4:6]}, {qS[6:8]}")
    A(f"v_pk_add_f32 {qL4[0:2]}, {qL4[0:2]}, {qL4[2:4]}")
    A(f"v_add_f32 {qt[2]}, {qL4[0]}, {qL4[1]}")
    A(f"v_mov_b32 {qt[3]}, {qt[2]}")
    A("s_nop 1")
    A(f"v_permlane16_swap_b32 {qt[2]}, {qt[3]}")
    A(f"v_add_f32 {qt[2]}, {qt[2]}, {qt[3]}")
    A(f"v_mov_b32 {qt[3]}, {qt[2]}")
    A("s_nop 1")
    A(f"v_permlane32_swap_b32 {qt[2]}, {qt[3]}")
    A(f"v_add_f32 {qt[2]}, {qt[2]}, {qt[3]}")
    A(f"s_mov_b64 exec, 15")
    A(f"ds_write2_b32 {qSW}, {qt[2]}, {qt[0]} offset0:0 offset1:16")
    TS(7)
    qsync(4, 4)
    A(f"ds_read_b128 {qM4}, {qSR} offset:64")
    A(f"ds_read_b128 {qL4}, {qSR}")
    A(f"ds_read_b32 {qt[0]}, {qSY} offset:20")
    for ks in range(4):
        for x in range(2):
            A(f"ds_read_b128 {qPB[(ks*2+x)*4:(ks*2+x)*4+4]}, {qPBA[x]} offset:{ks*256}")
    A("s_waitcnt lgkmcnt(8)")
    A(f"v_readfirstlane_b32 {st[1]}, {qt[0]}")
    A(f"v_max3_f32 {qt[1]}, {qM4[0]}, {qM4[1]}, {qM4[2]}")
    A(f"v_max_f32 {qt[1]}, {qt[1]}, {qM4[3]}")
    for k in range(4):
        A(f"v_sub_f32 {qM4[k]}, {qM4[k]}, {qt[1]}")
    def weights():
        for k in range(4):
            A(f"v_exp_f32 {qM4[k]}, {qM4[k]}")
        A(f"v_mov_b32 {qG[3]}, {sTAG}")
        A(f"v_pk_mul_f32 {qL4[0:2]}, {qL4[0:2]}, {qM4[0:2]}")
        A(f"v_pk_fma_f32 {qL4[0:2]}, {qL4[2:4]}, {qM4[2:4]}, {qL4[0:2]}")
        A(f"v_add_f32 {qL4[0]}, {qL4[0]}, {qL4[1]}")
        A(f"v_rcp_f32 {qL4[2]}, {qL4[0]}")
        A(f"v_log_f32 {qL4[1]}, {qL4[0]}")
        A(f"s_mov_b32 {sFB}, {NFAIL}")
        A(f"v_pk_mul_f32 {qM4[0:2]}, {qM4[0:2]}, {qL4[2:4]} op_sel_hi:[1,0]")
        A(f"v_pk_mul_f32 {qM4[2:4]}, {qM4[2:4]}, {qL4[2:4]} op_sel_hi:[1,0]")
        A(f"v_add_f32 {qG[2]}, {qt[1]}, {qL4[1]}")
    qDK = [qS[0:4], qS[4:8], qQ2[0:4], qQ2[4:8]]
    def vtr(ks):
        for x in range(2):
            for T in range(2):
                o = (ks*2+x)*4 + T*2
                A(f"ds_read_b64_tr_b16 {qVT[o:o+2]}, {qTRb if x else qTRa} offset:{ks*8192+T*4096}")
    def pvm(k):
        d = qDK[k // 2]
        A(f"v_mfma_f32_16x16x32_bf16 {d}, {qVT[4*k:4*k+4]}, {qPB[4*k:4*k+4]}, {'0' if k % 2 == 0 else d}")
    def acc(ks):
        w_ = qM4[ks & ~1:(ks & ~1) + 2]
        sel = f"op_sel:[0,{ks & 1}] op_sel_hi:[1,{ks & 1}]" if ks == 0 else f"op_sel:[0,{ks & 1},0] op_sel_hi:[1,{ks & 1},1]"
        for h_ in range(2):
            if ks == 0:
                A(f"v_pk_mul_f32 {qD1[2*h_:2*h_+2]}, {qDK[ks][2*h_:2*h_+2]}, {w_} {sel}")
            else:
                A(f"v_pk_fma_f32 {qD1[2*h_:2*h_+2]}, {qDK[ks][2*h_:2*h_+2]}, {w_}, {qD1[2*h_:2*h_+2]} {sel}")
    A(f"s_cmp_ge_u32 {st[1]}, 4")
    A("s_cbranch_scc1 L_pvall")
    weights()
    TS(14)
    C("V is still landing: one k-step (32 keys) at a time")
    for ks in range(4):
        qsync(5, ks + 1, add=False, lbl=f"v{ks}", spec=lambda: vtr(ks), nspec=4)
        if ks: acc(ks - 1)
        A("s_waitcnt lgkmcnt(2)")
        pvm(2*ks)
        A("s_waitcnt lgkmcnt(0)")
        pvm(2*ks + 1)
    A("s_branch L_pvend")
    LB("L_pvall")
    TS(14)
    vtr(0);
    weights()
    A("s_waitcnt lgkmcnt(4)")
    vtr(1); vtr(2)
    A("s_waitcnt lgkmcnt(10)")
    pvm(0)
    A("s_waitcnt lgkmcnt(8)")
    pvm(1)
    vtr(3)
    for k in range(2, 8):
        A(f"s_waitcnt lgkmcnt({14-2*k})")
        pvm(k)
    acc(0); acc(1); acc(2)
    LB("L_pvend")
    A(f"s_mov_b64 exec, {sBb}")
    A("s_nop 5")
    acc(3)
    A(f"v_cvt_pk_bf16_f32 {qG[0]}, {qD1[0]}, {qD1[1]}")
    A(f"v_cvt_pk_bf16_f32 {qG[1]}, {qD1[2]}, {qD1[3]}")
    A(f"global_store_dwordx4 {qOPUB}, {qG}, {pWS} {opts.get('pst','')}")
    A("s_mov_b64 exec, -1")
    TS(8)
    if opts.get("orem", 10):
        C("loads return in order: a poll cannot come back before the weight tiles, so it is issued just before they are in")
        if opts.get("oearly"):
            ld_o(qO2)
            if opts.get("holdn", 0):
                A("s_mov_b64 exec, 1")
                A(f"ds_add_u32 {qSY}, {qON} offset:36")
                A("s_mov_b64 exec, -1")
            A(f"s_mov_b32 {st[3]}, 0")
            A("s_waitcnt vmcnt(0)")
            A(f"v_xor_b32 {qt[0]}, {qO2[3]}, {qO2[7]}")
            A(f"v_bitop3_b32 {qt[0]}, {qO2[11]}, {qO2[15]}, {qt[0]} bitop3:0xbe")
            A(f"v_bitop3_b32 {qt[0]}, {qO2[3]}, {sTAG}, {qt[0]} bitop3:0xbe")
            A(f"v_bitop3_b32 {qt[0]}, {qO2[11]}, {sTAG}, {qt[0]} bitop3:0xbe")
            A(f"v_cmp_ne_u32 vcc, 0, {qt[0]}")
            A(f"s_cbranch_vccz L_ookB")
        elif opts.get("orem1", 0):
            qsync(3, 1, add=False, lbl="3a")
            ld_o(qO2)
        qsync(3, 2 if opts.get("orem1", 0) else 1, add=False)
    ld_o()
    if opts.get("o2", 0):
        A("s_nop 7")
        A("s_nop 7")
        ld_o(qO2)
    A(f"s_mov_b32 {sFB}, {NFAIL}")
    TS(9)
    sPRE = st[3]
    def preload():
        C("wo / w2 operands and the FFN product, once the tiles and h are in LDS")
        for k in (4, 5):
            A(f"ds_read_b128 {qPB[4*k:4*k+4]}, {qHA} offset:{(k-4)*64}")
            for T in range(2):
                A(f"ds_read_b64_tr_b16 {qVT[k*4+T*2:k*4+T*2+2]}, {qTRw} offset:{k*4096+T*512}")
        for k in range(4):
            for T in range(2):
                A(f"ds_read_b64_tr_b16 {qVT[k*4+T*2:k*4+T*2+2]}, {qTRw} offset:{k*4096+T*512}")
        A(f"s_mov_b32 {sPRE}, 1")
    def f2(n):
        A(f"s_waitcnt lgkmcnt({n})")
        A(f"v_mfma_f32_16x16x32_bf16 {qD0}, {qVT[16:20]}, {qPB[16:20]}, 0")
        A(f"v_mfma_f32_16x16x32_bf16 {qD0}, {qVT[20:24]}, {qPB[20:24]}, {qD0}")
    A(f"s_mov_b32 {sPRE}, 0")
    def ochk(r, ok):
        A(f"v_xor_b32 {qt[0]}, {r[3]}, {r[7]}")
        A(f"v_bitop3_b32 {qt[0]}, {r[11]}, {r[15]}, {qt[0]} bitop3:0xbe")
        A(f"v_bitop3_b32 {qt[0]}, {r[3]}, {sTAG}, {qt[0]} bitop3:0xbe")
        A(f"v_bitop3_b32 {qt[0]}, {r[11]}, {sTAG}, {qt[0]} bitop3:0xbe")
        A(f"v_cmp_ne_u32 vcc, 0, {qt[0]}")
        A(f"s_cbranch_vccz {ok}")
    if opts.get("orem1", 0) and not opts.get("oearly"):
        A("s_waitcnt vmcnt(4)")
        ochk(qO2, "L_ookB")
    LB("L_ochk")
    if opts.get("o2", 0):
        A("s_waitcnt vmcnt(4)")
        ochk(qO, "L_ookA")
        ld_o(qO)
        A("s_waitcnt vmcnt(4)")
        ochk(qO2, "L_ookB")
        retry(lambda: ld_o(qO2), "L_ochk", "qho")
    elif opts.get("omask", 1):
        sO = [sM[2], sM[3], sA, sC]
        A("s_waitcnt vmcnt(0)")
        for u in range(4):
            A(f"v_cmp_ne_u32 {sO[u]}, {sTAG}, {qO[4*u+3]}")
        A(f"s_or_b64 vcc, {sO[0]}, {sO[1]}")
        A(f"s_or_b64 exec, {sO[2]}, {sO[3]}")
        A(f"s_or_b64 vcc, vcc, exec")
        A("s_mov_b64 exec, -1")
        A("s_cbranch_vccz L_ookA")
        def reld():
            for u in range(4):
                A(f"s_mov_b64 exec, {sO[u]}")
                A(f"s_cbranch_execz L_osk{u}")
                A(f"global_load_dwordx4 {qO[4*u:4*u+4]}, {qOP}, {pWS} offset:{u*512} sc1")
                LB(f"L_osk{u}")
            A("s_mov_b64 exec, -1")
        retry(reld, "L_ochk", "qho")
    else:
        A("s_waitcnt vmcnt(0)")
        ochk(qO, "L_ookA")
        if opts.get("osleep"): A(f"s_sleep {opts['osleep']}")
        retry(lambda: ld_o(qO), "L_ochk", "qho")
    def combine(qO):
        TS(10)
        def unp(u):
            A(f"v_lshlrev_b32 {qU[4*u]}, 16, {qO[4*u]}")
            A(f"v_and_b32 {qU[4*u+1]}, {sHI}, {qO[4*u]}")
            A(f"v_lshlrev_b32 {qU[4*u+2]}, 16, {qO[4*u+1]}")
            A(f"v_and_b32 {qU[4*u+3]}, {sHI}, {qO[4*u+1]}")
        A(f"ds_read_b32 {qt[5]}, {qSY} offset:24")
        A(f"v_max3_f32 {qt[0]}, {qO[2]}, {qO[6]}, {qO[10]}")
        A(f"v_max_f32 {qt[0]}, {qt[0]}, {qO[14]}")
        A(f"v_mov_b32 {qt[1]}, {qt[0]}")
        unp(0)
        A(f"v_permlane32_swap_b32 {qt[0]}, {qt[1]}")
        A(f"v_max_f32 {qt[0]}, {qt[0]}, {qt[1]}")
        for u in range(4):
            A(f"v_sub_f32 {qO[4*u+2]}, {qO[4*u+2]}, {qt[0]}")
        for u in range(4):
            A(f"v_exp_f32 {qO[4*u+2]}, {qO[4*u+2]}")
        unp(1); unp(2)
        A("s_waitcnt lgkmcnt(0)")
        A(f"v_readfirstlane_b32 {st[1]}, {qt[5]}")
        unp(3)
        A(f"s_cmp_lt_u32 {st[1]}, 2")
        A(f"s_cbranch_scc1 L_nopre{qO.n}")
        preload()
        LB(f"L_nopre{qO.n}")
        A(f"v_add_f32 {qt[2]}, {qO[2]}, {qO[6]}")
        A(f"v_add3_f32 {qt[2]}, {qt[2]}, {qO[10]}, {qO[14]}" if False else f"v_add_f32 {qt[3]}, {qO[10]}, {qO[14]}")
        A(f"v_pk_mul_f32 {qS[0:2]}, {qU[0:2]}, {qO[2:4]} op_sel_hi:[1,0]")
        A(f"v_add_f32 {qt[2]}, {qt[2]}, {qt[3]}")
        A(f"v_pk_mul_f32 {qS[2:4]}, {qU[2:4]}, {qO[2:4]} op_sel_hi:[1,0]")
        A(f"v_mov_b32 {qt[3]}, {qt[2]}")
        for u in range(1, 4):
            A(f"v_pk_fma_f32 {qS[0:2]}, {qU[4*u:4*u+2]}, {qO[4*u+2:4*u+4]}, {qS[0:2]} op_sel_hi:[1,0,1]")
            A(f"v_pk_fma_f32 {qS[2:4]}, {qU[4*u+2:4*u+4]}, {qO[4*u+2:4*u+4]}, {qS[2:4]} op_sel_hi:[1,0,1]")
            if u == 1:
                A(f"v_permlane32_swap_b32 {qt[2]}, {qt[3]}")
                A(f"v_add_f32 {qt[2]}, {qt[2]}, {qt[3]}")
            if u == 2:
                A(f"v_rcp_f32 {qt[2]}, {qt[2]}")
        A("s_nop 1")
        A(f"v_permlane32_swap_b32 {qS[0]}, {qS[2]}")
        A(f"v_permlane32_swap_b32 {qS[1]}, {qS[3]}")
        A(f"v_pk_add_f32 {qS[0:2]}, {qS[0:2]}, {qS[2:4]}")
        A(f"v_pk_mul_f32 {qS[0:2]}, {qS[0:2]}, {pair(qt[2])} op_sel_hi:[1,0]")
        A(f"v_cvt_pk_bf16_f32 {qS[0]}, {qS[0]}, {qS[1]}")
        A(f"ds_write_b32 {qQW}, {qS[0]} offset:{L_OL - L_QL}")
    if opts.get("o2", 0) or opts.get("orem1", 0) or opts.get("oearly"):
        LB("L_ookB")
        combine(qO2)
        A("s_branch L_odone")
    LB("L_ookA")
    combine(qO)
    LB("L_odone")
    A("s_mov_b64 exec, 1")
    A(f"ds_add_u32 {qSY}, {qON} offset:28")
    A("s_mov_b64 exec, -1")
    A(f"s_cmp_eq_u32 {sPRE}, 0")
    A("s_cbranch_scc0 L_havepre")
    qsync(6, 2, "qho", add=False)
    preload()
    LB("L_havepre")
    f2(8)
    def ord_():
        A(f"ds_read2_b32 {pair(qt[2])}, {qSY} offset0:8 offset1:10")
        for k in range(4):
            A(f"ds_read_b128 {qPB[4*k:4*k+4]}, {qOA} offset:{k*64}")
    A("s_waitcnt lgkmcnt(0)")
    qsync(7, 4, "qho", add=False, spec=ord_, nspec=5)
    for k in range(4):
        A(f"s_waitcnt lgkmcnt({3-k})")
        A(f"v_mfma_f32_16x16x32_bf16 {qD0}, {qVT[4*k:4*k+4]}, {qPB[4*k:4*k+4]}, {qD0}")
    A("s_nop 7" if ONE else f"s_mov_b64 exec, {sBb}")
    if not ONE:
        if PRI: A(f"v_xor_b32 {qP3}, {qt[2]}, {qP3}")
        if NEAR: A(f"v_xor_b32 {qt[0]}, 0x2000, {qP3}")
        A("s_nop 4" if PRI else "s_nop 5" if NEAR else "s_nop 6")
    for k in range(4):
        A(f"v_and_or_b32 {qD0[k]}, {qD0[k]}, {qFF}, {sT[k]}")
    if D2 is not None:
        A(f"global_store_dwordx4 {qP3}, {qD0}, {pWS} {opts.get('p3f', 'sc1')}")
        if not ONE:
            if PRI: TS(11)
            if opts.get("gap"): A(f"s_sleep {opts['gap']}")
            if not opts.get("no2"): A(f"global_store_dwordx4 {qt[0]}, {qD0}, {pWS} {opts.get('p3g', 'sc1')}")
    elif DU:
        A(f"global_store_dwordx4 {qP3}, {qD0}, {pWS} offset:-2048 sc1")
        A(f"global_store_dwordx4 {qP3}, {qD0}, {pWS} offset:2048 sc1")
    else:
        A(f"global_store_dwordx4 {qP3}, {qD0}, {pWS} sc1")
    if not PRI: TS(11)
    C("write-through copies of the partials, for a group that is spread over several dies")
    A("s_mov_b64 exec, -1")
    if not opts.get("nobk"):
        A(f"v_readfirstlane_b32 {st[1]}, {qt[3]}")
        A(f"s_cmp_eq_u32 {st[1]}, 0")
        A("s_cbranch_scc1 L_qdone")
        for x in bk("qho"): A(x)
        LB("L_qdone")
    CN(15)
    TSDUMP(16)
    LB("L_end")
    A("s_endpgm")
    if NEAR:
        L_ = L;
        LB("L_PR")
        A(f"s_cmp_eq_u32 s2, {opts.get('pwg', 1)}")
        A("s_cbranch_scc0 L_end")
        A("s_barrier")
        A(f"s_getreg_b32 {sW}, hwreg(HW_REG_XCC_ID)")
        A(f"s_bfe_u32 {sW}, {sW}, 0x10002")
        A("s_waitcnt lgkmcnt(0)")
        A(f"s_load_dword {sTAG}, {pWS}, {W_EP}")
        add64(sA, pWS, 0x380000)
        NPB = opts.get("npb", 6)
        for cp in range(2):
            for k in range(NPB):
                A(f"s_load_dword s{70+cp*8+k}, {sA}, {cp*0x2000 + k*0x240} glc")
        A("s_waitcnt lgkmcnt(0)")
        A(f"s_add_u32 {sTAG}, {sTAG}, {EP_INC:#x}")
        A(f"s_mov_b32 {st[2]}, -1")
        A(f"s_mov_b32 {st[3]}, -1")
        A(f"s_mov_b32 {st[1]}, {opts.get('probe', 1)}")
        LB("L_probe")
        for cp in range(2):
            A(f"s_memtime {sBb}")
            A("s_waitcnt lgkmcnt(0)")
            for k in range(NPB):
                A(f"s_load_dword s{70+k}, {sA}, {cp*0x2000 + k*0x240} glc")
            A(f"s_waitcnt lgkmcnt({NPB-1})")
            A(f"s_memtime {sC}")
            A("s_waitcnt lgkmcnt(0)")
            A(f"s_sub_u32 {st[0]}, {sC[0]}, {sBb[0]}")
            A(f"s_min_u32 {st[2+cp]}, {st[2+cp]}, {st[0]}")
        A(f"s_sub_u32 {st[1]}, {st[1]}, 1")
        A("s_cbranch_scc0 L_probe" if False else f"s_cmp_lg_u32 {st[1]}, 0")
        A("s_cbranch_scc1 L_probe")
        A(f"s_cmp_gt_u32 {st[2]}, {st[3]}")
        A(f"s_cselect_b32 {st[0]}, 1, 0")
        A(f"s_xor_b32 {st[0]}, {st[0]}, {sW}")
        A(f"s_andn2_b32 {st[1]}, {sTAG}, 1")
        A(f"s_or_b32 {st[0]}, {st[0]}, {st[1]}")
        A(f"v_mov_b32 v2, 128")
        A(f"v_mov_b32 v3, {st[0]}")
        A("s_mov_b64 exec, 1")
        A(f"global_store_dword v2, v3, {pWS} sc1")
        A("s_endpgm")
    L += TAIL
    if opts.get("layout", 1):
        def idx(lbl): return L.index(lbl + ":")
        a_ld, a_ln, a_ln2, a_ld2, a_fin, a_q2 = idx("L_LD"), idx("L_LN"), idx("L_LN2"), idx("L_LD2"), idx("L_FIN"), idx("L_Q2")
        head, ld1, ln1, ln2, ld2, fin, rest = L[:a_ld], L[a_ld:a_ln], L[a_ln:a_ln2], L[a_ln2:a_ld2], L[a_ld2:a_fin], L[a_fin:a_q2], L[a_q2:]
        assert ld1[-1].strip() == "s_branch L_LD2"
        L[:] = head + ln1 + ["  s_branch L_LN2"] + ld1[:-1] + ld2 + ["  s_branch L_FIN"] + ln2 + rest[:rest.index("L_end:")] + ["  s_endpgm"] + fin + rest[rest.index("L_end:"):]
    TCH = opts.get("touch", 1)
    if TCH:
        pads = []
        for lbl in ("L_Q3", "L_qok", "L_pvall", "L_ookA", "L_FIN", "L_dok0") + (("L_Q2",) if TCH > 1 else ()):
            k = L.index(lbl + ":")
            if lbl == "L_Q3":
                L[k:k] = []
            prev = [x for x in L[:k] if x.strip() and not x.strip().startswith(";") and not x.startswith(".")][-1].strip()
            assert prev.startswith(("s_branch", "s_endpgm")), (lbl, prev)
            L[k:k] = [f"L_pad{len(pads)}:", f"  s_sleep {opts.get('tsl', 6)}", "  s_setpc_b64 s[90:91]"]
            pads.append(lbl)
        k = L.index("L_PR:")
        code = ["L_PR:", "  s_barrier", f"  s_cmp_eq_u32 s2, {opts.get('pwg', 1)}", "  s_cbranch_scc1 L_PR1",
                "  ; walks over the later code once, so that it is in the instruction cache when the other waves get there",
                f"  s_sleep {opts.get('tw', 40)}"]
        tg = [f"L_pad{n_}" for n_ in range(len(pads))]
        if opts.get("spad"):
            code += [f"  v_mov_b32 {qSY}, {L_SY}", "  s_mov_b64 exec, 1"]
            tg += ["L_sy" + x for x in opts["spad"].split()]
            tg.sort(key=lambda t_: L.index(t_ + ":"))
        for n_, t_ in enumerate(tg):
            code += ([f"  s_mov_b32 {sSY}, 0"] if t_.startswith("L_sy") else []) + ["  s_getpc_b64 s[88:89]", f"L_tc{n_}:", f"  s_add_u32 s88, s88, {t_}-L_tc{n_}", "  s_addc_u32 s89, s89, -1" , "  s_swappc_b64 s[90:91], s[88:89]"]
        code += ["  s_endpgm"] + (["L_ret:", "  s_setpc_b64 s[90:91]"] if opts.get("spad") else []) + ["L_PR1:"]
        assert L[k+3].strip() == "s_barrier"
        L[k:k+4] = code
    LB("L_codeend")
    L.append(".fill 256, 4, 0xbf800000")
    L.append('.section .rodata,"a"')
    L.append(".p2align 6")
    L.append(f".amdhsa_kernel {KNAME}")
    nv = max(VQ.hi, VL.hi, VD.hi)
    nv = (nv + 7)//8*8
    L.append(f"  .amdhsa_next_free_vgpr {nv}")
    L.append("  .amdhsa_next_free_sgpr 100")
    L.append(f"  .amdhsa_accum_offset {nv}")
    L.append("  .amdhsa_group_segment_fixed_size 0")
    L.append("  .amdhsa_kernarg_size 96")
    L.append("  .amdhsa_user_sgpr_count 2")
    L.append("  .amdhsa_user_sgpr_kernarg_segment_ptr 1")
    L.append("  .amdhsa_system_sgpr_workgroup_id_x 1")
    L.append("  .amdhsa_float_denorm_mode_32 3")
    L.append(".end_amdhsa_kernel")
    return L

def header():
    ref = open("recurrent_scan__sliding_block_cached__glu_gated_swiglu__decode.s.ref").read().splitlines()
    out = []
    for l in ref:
        if not l.startswith(";"): break
        if "@launch" not in l: out.append(l)
    return out

if __name__ == "__main__":
    cfgs = json.loads(sys.argv[1]) if len(sys.argv) > 1 else {"k15": {}}
    for name, o in cfgs.items():
        for diag in (False, True):
            fn = name + ("_diag" if diag else "") + ".s"
            L = gen(diag=diag, header=header(), opts=o)
            for p in check_hazards(L): print("HAZARD", fn, p)
            open("bench/" + fn, "w").write("\n".join(L) + "\n")
```
